```python
import torch

def _softmax(x, axis=-1):
    return torch.softmax(x, dim=axis)
def _gelu(x):
    return torch.nn.functional.gelu(x, approximate="tanh")
def _silu(x):
    return torch.nn.functional.silu(x)
def _sigmoid(x):
    return torch.sigmoid(x)
def _layernorm(x, axis=-1, eps=1e-5):
    m = x.mean(dim=axis, keepdim=True)
    v = x.var(dim=axis, keepdim=True, unbiased=False)
    return (x - m) / torch.sqrt(v + eps)
def _scatter_add(tgt, idx, src, axis=0):
    return tgt.clone().index_add_(axis, idx, src)
def _segment_sum(src, seg, n):
    out = torch.zeros((n,) + src.shape[1:], dtype=src.dtype)
    return out.index_add_(0, seg, src)
def _pad(x, pw):
    flat = tuple(v for pair in reversed(pw) for v in pair)
    return torch.nn.functional.pad(x, flat)

kernel_name = 'recurrent_scan__grouped_kv_mqa__geglu_ffn__prompt'

def setup_inputs():

    _w = (lambda a: (lambda t: t.to(torch.bfloat16) if t.is_floating_point() else t)(torch.as_tensor(a)))
    def _A_setup():
        B, S, D, H = 1, 2048, 512, 32
        Dh = D // H
        return {
            "x": _w((lambda *s: torch.randn(*s, dtype=torch.bfloat16) * 0.05)(B, S, D)),
            "wq": _w((lambda *s: torch.randn(*s, dtype=torch.bfloat16) * 0.05)(D, H * Dh)),
            "wk": _w((lambda *s: torch.randn(*s, dtype=torch.bfloat16) * 0.05)(D, Dh)),
            "wv": _w((lambda *s: torch.randn(*s, dtype=torch.bfloat16) * 0.05)(D, Dh)),
            "wo": _w((lambda *s: torch.randn(*s, dtype=torch.bfloat16) * 0.05)(H * Dh, D)),
        }
    _A_in = _A_setup()

    def _B_setup():
        B, S, D, F = 1, 2048, 512, 1792
        return {
            "x": _w((lambda *s: torch.randn(*s, dtype=torch.bfloat16) * 0.05)(B, S, D)),
            "w_gate": _w((lambda *s: torch.randn(*s, dtype=torch.bfloat16) * 0.05)(D, F)),
            "w_up": _w((lambda *s: torch.randn(*s, dtype=torch.bfloat16) * 0.05)(D, F)),
            "w_down": _w((lambda *s: torch.randn(*s, dtype=torch.bfloat16) * 0.05)(F, D)),
        }
    _B_in = _B_setup()

    return {
        "A_x": _A_in["x"],
        "A_wq": _A_in["wq"],
        "A_wk": _A_in["wk"],
        "A_wv": _A_in["wv"],
        "A_wo": _A_in["wo"],
        "B_x": _B_in["x"],
        "B_w_gate": _B_in["w_gate"],
        "B_w_up": _B_in["w_up"],
        "B_w_down": _B_in["w_down"],
    }

def reference(A_x, A_wq, A_wk, A_wv, A_wo, B_x, B_w_gate, B_w_up, B_w_down):
    def _A_ref(x, wq, wk, wv, wo):
        B, S, D = x.shape
        H = 32
        Dh = D // H
        q = (lambda x, *d: x.permute(*d))((x @ wq).reshape(B, S, H, Dh), 0, 2, 1, 3)
        k = x @ wk
        v = x @ wv
        scores = torch.einsum("bhqd,bkd->bhqk", q, k) * (Dh ** -0.5)
        p = _softmax(scores, axis=-1)
        o = torch.einsum("bhqk,bkd->bhqd", p, v)
        return (lambda x, *d: x.permute(*d))(o, 0, 2, 1, 3).reshape(B, S, H * Dh) @ wo

    def _B_ref(x, w_gate, w_up, w_down):
        return (_gelu(x @ w_gate) * (x @ w_up)) @ w_down

    x = A_x
    xn = _layernorm(x, axis=-1)
    s = _A_ref(xn, A_wq, A_wk, A_wv, A_wo)
    g = _silu(_B_ref(xn, B_w_gate, B_w_up, B_w_down))
    return x + s * g
```

```python
import re, sys

class Reg:
    def __init__(self, kind, base, n=1):
        self.kind, self.base, self.n = kind, base, n
    def __getitem__(self, i):
        if isinstance(i, slice):
            st = i.start or 0
            en = i.stop if i.stop is not None else self.n
            assert 0 <= st < en <= self.n, (st, en, self.n)
            return Reg(self.kind, self.base + st, en - st)
        assert 0 <= i < self.n, (i, self.n)
        return Reg(self.kind, self.base + i, 1)
    def __str__(self):
        if self.n == 1: return f"{self.kind}{self.base}"
        return f"{self.kind}[{self.base}:{self.base + self.n - 1}]"
    __repr__ = __str__
    def __format__(self, spec): return str(self)

class Kernel:
    def __init__(self, name, grid, block, lds, nvgpr=256, nagpr=0):
        self.name, self.grid, self.block, self.lds = name, grid, block, lds
        self.lines = []
        self.vnext = 1
        self.anext = 0
        self.snext = 4
        self.vmax = nvgpr
        self.amax = nagpr
        self.vhigh = 1
        self.shigh = 4
        self.ahigh = 0
        self.uid = 0
    def v(self, n=1, align=None):
        align = align or (1 if n == 1 else 2 if n == 2 else 4)
        b = (self.vnext + align - 1) // align * align
        self.vnext = b + n
        assert self.vnext <= self.vmax, f"out of VGPRs in {self.name}: {self.vnext}"
        self.vhigh = max(self.vhigh, self.vnext)
        return Reg('v', b, n)
    def a(self, n=1, align=None):
        align = align or (1 if n == 1 else 2 if n == 2 else 4)
        b = (self.anext + align - 1) // align * align
        self.anext = b + n
        assert self.anext <= self.amax, f"out of AGPRs in {self.name}"
        self.ahigh = max(self.ahigh, self.anext)
        return Reg('a', b, n)
    def s(self, n=1, align=None):
        align = align or (1 if n == 1 else 2 if n == 2 else 4)
        b = (self.snext + align - 1) // align * align
        self.snext = b + n
        assert self.snext <= 100, f"out of SGPRs in {self.name}"
        self.shigh = max(self.shigh, self.snext)
        return Reg('s', b, n)
    def mark(self): return (self.vnext, self.anext, self.snext)
    def release(self, m): self.vnext, self.anext, self.snext = m
    def __call__(self, txt):
        for l in txt.split('\n'):
            l = l.strip()
            if l: self.lines.append("    " + l)
    def label(self, name):
        self.lines.append(f"{name}:")
    def newlabel(self, base):
        self.uid += 1
        return f"L_{self.name}_{base}_{self.uid}"
    def comment(self, txt): self.lines.append(f"    ; {txt}")
    def nop(self, n):
        while n > 0:
            k = min(n, 16)
            self(f"s_nop {k-1}")
            n -= k
    def srd(self, ptr, nbytes, off=0, r=None):
        r = r or self.s(4)
        if off:
            self(f"s_add_u32 {r[0]}, {ptr[0]}, {off & 0xffffffff}")
            self(f"s_addc_u32 {r[1]}, {ptr[1]}, {off >> 32}")
            self(f"s_and_b32 {r[1]}, {r[1]}, 0xffff")
        else:
            self(f"s_mov_b32 {r[0]}, {ptr[0]}")
            self(f"s_and_b32 {r[1]}, {ptr[1]}, 0xffff")
        self(f"s_mov_b32 {r[2]}, {nbytes}")
        self(f"s_mov_b32 {r[3]}, 0x20000")
        return r
    def text(self):
        t = f".globl {self.name}\n.p2align 8\n.type {self.name},@function\n{self.name}:\n"
        return t + "\n".join(self.lines) + "\n"
    def kd(self, force_v=None):
        nv = self.vhigh
        acc = (nv + 3) // 4 * 4
        tot = acc + self.ahigh if self.ahigh else nv
        if force_v: tot = max(tot, force_v)
        return (f".p2align 6\n.amdhsa_kernel {self.name}\n"
                f"  .amdhsa_next_free_vgpr {tot}\n  .amdhsa_next_free_sgpr {max(self.shigh, 16)}\n"
                f"  .amdhsa_accum_offset {acc}\n  .amdhsa_group_segment_fixed_size 0\n"
                f"  .amdhsa_kernarg_size 96\n  .amdhsa_user_sgpr_count 2\n"
                f"  .amdhsa_user_sgpr_kernarg_segment_ptr 1\n  .amdhsa_system_sgpr_workgroup_id_x 1\n"
                f"  .amdhsa_float_denorm_mode_32 3\n  .amdhsa_float_denorm_mode_16_64 3\n"
                f".end_amdhsa_kernel\n")

def module_text(header, kernels, launches):
    t = header
    for (k, grid, block, lds) in launches:
        t += f"; @launch kernel={k} grid=({grid},1,1) block=({block},1,1) lds={lds}\n"
    t += '.amdgcn_target "amdgcn-amd-amdhsa--gfx950"\n.text\n'
    for k in kernels: t += k.text()
    t += '.section .rodata,"a"\n'
    for k in kernels: t += k.kd()
    return t

_REG = re.compile(r'\b([vas])(\d+)\b|\b([vas])\[(\d+):(\d+)\]|\b(vcc|exec|m0|scc|vcc_lo|vcc_hi|exec_lo|exec_hi)\b')
def regs_of(tok):
    out = set()
    for m in _REG.finditer(tok):
        if m.group(1): out.add((m.group(1), int(m.group(2))))
        elif m.group(3):
            for i in range(int(m.group(4)), int(m.group(5)) + 1): out.add((m.group(3), i))
        else:
            n = m.group(6)
            if n.startswith('vcc'): out.add(('s', 106)); out.add(('s', 107))
            elif n.startswith('exec'): out.add(('x', 0))
            elif n == 'm0': out.add(('m', 0))
    return out

TRANS = ('v_exp_', 'v_log_', 'v_rcp_', 'v_rsq_', 'v_sqrt_', 'v_sin_', 'v_cos_')
class Ins:
    def __init__(self, idx, line):
        self.idx, self.line = idx, line
        body = line.split(';')[0].strip()
        parts = body.split(None, 1)
        self.op = parts[0]
        rest = parts[1] if len(parts) > 1 else ''
        ops = [o.strip() for o in re.split(r',(?![^\[]*\])', rest)] if rest else []
        self.mods = ''
        if ops:
            sp = ops[-1].split(None, 1)
            if len(sp) > 1:
                ops[-1], self.mods = sp[0], sp[1]
        self.ops = ops
        op = self.op
        self.cls = 'other'; self.defs = set(); self.uses = set(); self.passes = 0
        self.srcA = set(); self.srcB = set(); self.srcC = set()
        R = [regs_of(o) for o in ops]
        allr = lambda l: set().union(*l) if l else set()
        if op.startswith('v_mfma'):
            self.cls = 'mfma'
            self.passes = 8 if '32x32' in op else 4
            self.defs = R[0]; self.srcA, self.srcB, self.srcC = R[1], R[2], R[3]
            self.uses = R[1] | R[2] | R[3]
        elif op.startswith('v_'):
            self.cls = 'valu'
            self.trans = op.startswith(TRANS)
            if op.startswith('v_cmp'):
                self.defs = R[0]; self.uses = allr(R[1:])
                if op.startswith('v_cmpx'): self.defs |= {('x', 0)}
            elif op.startswith('v_permlane') and 'swap' in op:
                self.defs = R[0] | R[1]; self.uses = R[0] | R[1]
            elif op.startswith(('v_add_co', 'v_sub_co', 'v_addc_co', 'v_subb_co', 'v_subrev_co', 'v_div_scale', 'v_mad_u64')):
                self.defs = R[0] | R[1]; self.uses = allr(R[2:])
            elif op.startswith(('v_fmac', 'v_dot2c', 'v_pk_fmac', 'v_writelane', 'v_mac')):
                self.defs = R[0]; self.uses = allr(R)
            elif op == 'v_nop':
                pass
            else:
                self.defs = R[0]; self.uses = allr(R[1:])
                if 'cndmask' in op and len(ops) == 3: self.uses |= {('s', 106), ('s', 107)}
            self.dpp = ('row_' in self.mods or 'quad_perm' in self.mods or 'wave_' in self.mods or 'row_' in line or 'quad_perm' in line)
        elif op.startswith('ds_'):
            self.cls = 'ds'
            if op.startswith(('ds_read', 'ds_bpermute', 'ds_permute', 'ds_swizzle')) or '_rtn' in op:
                self.defs = R[0]; self.uses = allr(R[1:])
            else:
                self.uses = allr(R)
        elif op.startswith(('buffer_', 'global_', 'flat_')):
            self.cls = 'vmem'
            islds = (' lds' in (' ' + self.mods)) or 'load_lds' in op
            self.islds = islds
            if 'load' in op and not islds:
                self.defs = R[0]; self.uses = allr(R[1:])
            elif 'atomic' in op and 'sc0' in self.mods:
                self.defs = R[0]; self.uses = allr(R)
            else:
                self.uses = allr(R)
            if islds: self.uses |= {('m', 0)}
            self.wide_store = ('store' in op and ('x3' in op or 'x4' in op))
            if self.wide_store:
                self.sdata = R[0] if op.startswith('buffer') else R[1]
        elif op.startswith(('s_load', 's_buffer_load', 's_memtime', 's_memrealtime', 's_atomic')):
            self.cls = 'smem'; self.defs = R[0] if R else set(); self.uses = allr(R[1:])
        elif op.startswith(('s_cbranch', 's_branch')):
            self.cls = 'branch'
        elif op in ('s_nop', 's_waitcnt', 's_barrier', 's_endpgm', 's_setprio', 's_sleep', 's_sethalt'):
            self.cls = 'misc'
        elif op.startswith('s_'):
            self.cls = 'salu'
            if op.startswith(('s_cmp', 's_bitcmp')):
                self.uses = allr(R)
            else:
                self.defs = R[0] if R else set(); self.uses = allr(R[1:])
                if 'saveexec' in op: self.defs |= {('x', 0)}
        self.ws = 1
        if op == 's_nop': self.ws = int(ops[0], 0) + 1

def check_hazards(lines, name='', verbose=True):
    ins = []; labels = {}
    for l in lines:
        s = l.split(';')[0].strip()
        if not s or s.startswith('.'): continue
        if s.endswith(':'):
            labels[s[:-1]] = len(ins); continue
        ins.append(Ins(len(ins), s))
    def succ(i):
        x = ins[i]
        if x.op == 's_endpgm': return []
        if x.op == 's_branch': return [labels[x.ops[0]]]
        if x.cls == 'branch': return [labels[x.ops[0]], i + 1]
        return [i + 1] if i + 1 < len(ins) else []
    vg = lambda s: {r for r in s if r[0] in 'va'}
    sg = lambda s: {r for r in s if r[0] == 's'}
    def need(p, c):
        n = 0; why = ''
        def up(k, w):
            nonlocal n, why
            if k > n: n, why = k, w
        if p.cls == 'valu':
            if c.cls == 'mfma' and vg(p.defs) & c.uses: up(2, 'VALU->MFMA src')
            if c.cls == 'mfma' and ('x', 0) in p.defs: up(4, 'VALU exec->MFMA')
            if c.cls == 'valu':
                if p.trans and not c.trans and vg(p.defs) & c.uses: up(1, 'trans->VALU')
                if c.op.startswith('v_permlane') and vg(p.defs) & c.uses: up(2, 'VALU->permlane')
                if c.op.startswith(('v_readlane', 'v_readfirstlane')) and vg(p.defs) & c.uses: up(1, 'VALU->readlane')
                if c.dpp and vg(p.defs) & c.uses: up(2, 'VALU->DPP')
                if sg(p.defs) & c.uses: up(4 if c.op.startswith(('v_readlane', 'v_writelane', 'v_div_fmas')) else 2, 'VALU sgpr->VALU')
                if ('x', 0) in p.defs: up(5, 'VALU exec->VALU (conservative)')
                if ('op_sel' in p.mods or 'dst_sel' in p.mods) and not p.op.startswith('v_pk') and vg(p.defs) & (c.uses | c.defs): up(1, 'opsel')
            if c.cls == 'vmem' and sg(p.defs) & c.uses: up(5, 'VALU sgpr->VMEM')
            if p.op.startswith('v_dot') and c.cls in ('valu', 'mfma', 'vmem', 'ds') and vg(p.defs) & (c.uses | c.defs):
                if not (c.op == p.op and not (vg(p.defs) & (regs_of(c.ops[1]) | regs_of(c.ops[2])))): up(3, 'DLop')
        if p.cls == 'mfma':
            t = {4: 0, 8: 1}[p.passes]
            if c.cls == 'mfma':
                if p.defs & (c.srcA | c.srcB): up((8, 12)[t], 'MFMA D->MFMA A/B')
                if p.defs & c.srcC and not (p.defs == c.srcC and p.passes == c.passes): up((6, 10)[t], 'MFMA D->MFMA C overlap')
                if p.defs & c.defs and not (p.defs == c.defs and p.passes == c.passes): up((6, 10)[t], 'MFMA WAW partial')
            elif c.cls in ('valu', 'vmem', 'ds'):
                if p.defs & (c.uses | c.defs): up((8, 12)[t], 'MFMA D->VALU/mem')
                if c.cls == 'valu' and p.srcC & c.defs: up((3, 7)[t], 'MFMA C WAR')
        if p.cls == 'salu' and ('m', 0) in p.defs and ('m', 0) in c.uses and c.cls in ('vmem', 'ds'): up(1, 'M0->LDSDMA')
        if p.cls == 'vmem' and p.wide_store and (p.sdata & c.defs): up(2 if c.cls == 'valu' else 1, 'store data WAR')
        return n, why
    errs = []
    for p in ins:
        if p.cls not in ('valu', 'mfma', 'salu', 'vmem'): continue
        lim = 12 if p.cls == 'mfma' else 5
        stack = [(j, 0) for j in succ(p.idx)]
        seen = {}
        while stack:
            j, d = stack.pop()
            if d >= lim or j >= len(ins): continue
            if seen.get(j, 99) <= d: continue
            seen[j] = d
            c = ins[j]
            n, why = need(p, c)
            if n > d:
                errs.append(f"[{name}] hazard {why}: need {n} have {d}: '{p.line}'  ->  '{c.line}' (ins {p.idx}->{j})")
            for k in succ(j): stack.append((k, d + c.ws))
    if verbose:
        for e in errs[:40]: print(e)
    return errs

class Stamper:
    def __init__(self, k, kidx, enable):
        self.k, self.kidx, self.on = k, kidx, enable
        self.n = 0
        if enable:
            self.regs = [k.s(2) for _ in range(enable)]
    def stamp(self, i, cycles=False):
        if self.on and i < self.on:
            self.k(f"{'s_memtime' if cycles else 's_memrealtime'} {self.regs[i]}")
    def flush(self, ws, vtmp, vtmp2, only_tid=0, r=None):
        if not self.on: return
        import layout as L
        k = self.k
        r = k.srd(ws, 8 * 256 * 256, L.STAMP, r=r)
        so = k.s(); sv = k.s(2)
        k("s_waitcnt lgkmcnt(0)")
        k(f"s_lshl_b32 {so}, s2, 8")
        k(f"s_add_u32 {so}, {so}, {self.kidx * 65536}")
        k(f"v_mov_b32 {vtmp2}, 0")
        k(f"v_cmp_eq_u32 vcc, {only_tid}, v0")
        k(f"s_and_saveexec_b64 {sv}, vcc")
        l = k.newlabel("nost")
        k(f"s_cbranch_execz {l}")
        for i, rg in enumerate(self.regs):
            k(f"v_mov_b32 {vtmp}, {rg[0]}")
            k(f"buffer_store_dword {vtmp}, {vtmp2}, {r}, {so} offen offset:{4*i}")
            k.nop(1)
        k.label(l)
        k(f"s_mov_b64 exec, {sv}")
```

```python
from asm import *
import layout as L

MF = "v_mfma_f32_32x32x16_bf16"

def emit_attn_fallback(k, R, kvsrd, lane, done_label):
    Q, C, O, S, P, Kf, Vf = R['Q'], R['C'], R['O'], R['S'][0], R['P'][0], R['Kf'][0], R['Vf'][0]
    vk, vv, tmp, tmp2, sct, vmask = R['gk'], R['gv'], R['tmp'], R['tmp2'], R['sct'], R['vmask']
    k(f"v_mov_b32 {tmp}, 0xff800000")
    k(f"s_mov_b32 {sct}, 0")
    l1 = k.newlabel("fb1")
    k.label(l1)
    k(f"buffer_load_dwordx4 {Kf}, {vk}, {kvsrd}, {sct} offen")
    k("s_waitcnt vmcnt(0)")
    k(f"{MF} {S}, {Kf}, {Q}, 0")
    k.nop(16)
    for i in range(0, 16, 2):
        k(f"v_max3_f32 {tmp}, {S[i]}, {S[i+1]}, {tmp}")
    k(f"s_add_u32 {sct}, {sct}, 2048")
    k(f"s_cmp_lt_u32 {sct}, {64*2048}")
    k(f"s_cbranch_scc1 {l1}")
    k(f"v_mov_b32 {tmp2}, {tmp}")
    k.nop(2)
    k(f"v_permlane32_swap_b32 {tmp}, {tmp2}")
    k.nop(2)
    k(f"v_max_f32 {tmp}, {tmp}, {tmp2}")
    for i in range(16):
        k(f"v_sub_f32 {C[i]}, 0, {tmp}")
        k(f"v_mov_b32 {O[i]}, 0")
    k(f"s_mov_b32 {sct}, 0")
    l2 = k.newlabel("fb2")
    k.label(l2)
    k(f"buffer_load_dwordx4 {Kf}, {vk}, {kvsrd}, {sct} offen")
    k(f"s_mov_b64 exec, {vmask}")
    k(f"buffer_load_dwordx4 {Vf[0:4]}, {vv}, {kvsrd}, {sct} offen")
    k(f"buffer_load_dwordx4 {Vf[4:8]}, {vv}, {kvsrd}, {sct} offen offset:512")
    k("s_mov_b64 exec, -1")
    k("s_waitcnt vmcnt(0)")
    k(f"{MF} {S}, {Kf}, {Q}, {C}")
    k.nop(16)
    for i in range(16):
        k(f"v_exp_f32 {S[i]}, {S[i]}")
    k.nop(1)
    for i in range(8):
        k(f"v_cvt_pk_bf16_f32 {P[i]}, {S[2*i]}, {S[2*i+1]}")
    k.nop(2)
    k(f"{MF} {O}, {Vf[0:4]}, {P[0:4]}, {O}")
    k(f"{MF} {O}, {Vf[4:8]}, {P[4:8]}, {O}")
    k.nop(16)
    k(f"s_add_u32 {sct}, {sct}, 2048")
    k(f"s_cmp_lt_u32 {sct}, {64*2048}")
    k(f"s_cbranch_scc1 {l2}")
    k(f"s_branch {done_label}")

def attn_kernel(name, NW=8, variant=0, stamps=0, kidx=0):
    k = Kernel(name, 256, NW * 64, 65536)
    ws = k.s(2)
    k(f"s_cmp_ge_u32 s2, 256")
    lend = k.newlabel("end")
    k(f"s_cbranch_scc1 {lend}")
    k(f"s_load_dwordx2 {ws}, s[0:1], 88")
    stp = Stamper(k, kidx, stamps)
    stp.stamp(0)
    lane = k.v(); wv = k.v()
    k(f"v_and_b32 {lane}, 63, v0")
    k(f"v_lshrrev_b32 {wv}, 6, v0")
    sw = k.s()
    k.nop(1)
    k(f"v_readfirstlane_b32 {sw}, {wv}")
    l16 = k.v()
    k(f"v_lshlrev_b32 {l16}, 4, {lane}")
    k("s_waitcnt lgkmcnt(0)")
    qsrd = k.srd(ws, 0x200000, L.QF)
    osrd = k.srd(ws, 0x200000, L.OF)
    kvsrd = k.srd(ws, 0x20000, L.KVF)
    srt = k.s(); shd = k.s(); st = k.s(); sq = k.s()
    k(f"s_lshr_b32 {srt}, s2, 4")
    k(f"s_lshl_b32 {srt}, {srt}, 2")
    k(f"s_and_b32 {st}, {sw}, 3")
    k(f"s_add_u32 {srt}, {srt}, {st}")
    k(f"s_and_b32 {shd}, s2, 15")
    k(f"s_lshl_b32 {shd}, {shd}, 1")
    k(f"s_lshr_b32 {st}, {sw}, 2")
    k(f"s_add_u32 {shd}, {shd}, {st}")
    k(f"s_lshl_b32 {sq}, {srt}, 5")
    k(f"s_add_u32 {sq}, {sq}, {shd}")
    k(f"s_lshl_b32 {sq}, {sq}, 10")
    Q = k.v(4); C = k.v(16); O = k.v(16); S = [k.v(16), k.v(16)]; P = [k.v(8), k.v(8)]
    Kf = [k.v(4), k.v(4)]; Vf = [k.v(8), k.v(8)]
    k(f"buffer_load_dwordx4 {Q}, {l16}, {qsrd}, {sq} offen")
    sgo = k.s(); slds = k.s(); sw2k = k.s()
    k(f"s_lshl_b32 {sw2k}, {sw}, 11")
    def dma(goff_s, lds_s):
        k(f"s_mov_b32 m0, {lds_s}")
        k.nop(1)
        k(f"buffer_load_dwordx4 {l16}, {kvsrd}, {goff_s} offen lds")
        k(f"buffer_load_dwordx4 {l16}, {kvsrd}, {goff_s} offen offset:1024 lds")
    k(f"s_mov_b32 {sgo}, {sw2k}")
    for p in range(3):
        dma(sgo, sgo)
        k(f"s_add_u32 {sgo}, {sgo}, 16384")
    ak = k.v(); av = k.v(); akn = k.v(); avn = k.v(); tmp = k.v(); tmp2 = k.v()
    gv = k.v()
    k(f"v_mov_b32 {ak}, {l16}")
    k(f"v_and_b32 {tmp}, 15, {lane}")
    k(f"v_lshlrev_b32 {tmp}, 4, {tmp}")
    k(f"v_lshrrev_b32 {tmp2}, 5, {lane}")
    k(f"v_lshlrev_b32 {tmp2}, 8, {tmp2}")
    k(f"v_add3_u32 {av}, {tmp}, {tmp2}, 1024" if False else f"v_add_u32 {av}, {tmp}, {tmp2}")
    k(f"v_add_u32 {av}, 1024, {av}")
    k(f"v_mov_b32 {gv}, {av}")
    k(f"v_add_u32 {akn}, 16384, {ak}")
    k(f"v_add_u32 {avn}, 16384, {av}")
    vmask = k.s(2)
    k(f"s_mov_b32 {vmask[0]}, 0x0000ffff")
    k(f"s_mov_b32 {vmask[1]}, 0x0000ffff")
    ones = k.v()
    k(f"v_mov_b32 {ones}, 0x3f803f80")
    if variant & 1:
        k(f"v_and_b32 {tmp}, 27, {lane}")
        k(f"v_cmp_eq_u32 vcc, 16, {tmp}")
        k.nop(2)
        k(f"v_cndmask_b32 {ones}, 0, {ones}, vcc")
    for b in range(2):
        for i in range(8):
            k(f"v_mov_b32 {Vf[b][i]}, {ones}")
            k(f"v_mov_b32 {P[b][i]}, 0")
    for i in range(16): k(f"v_mov_b32 {O[i]}, 0")
    k("s_waitcnt vmcnt(4)")
    k("s_barrier")
    k(f"ds_read_b128 {Kf[0]}, {ak}")
    k(f"ds_read_b128 {Kf[1]}, {ak} offset:2048")
    k("s_waitcnt lgkmcnt(1)")
    k(f"{MF} {S[0]}, {Kf[0]}, {Q}, 0")
    k.nop(16)
    k(f"v_max3_f32 {tmp}, {S[0][0]}, {S[0][1]}, {S[0][2]}")
    for i in range(3, 15, 2):
        k(f"v_max3_f32 {tmp}, {S[0][i]}, {S[0][i+1]}, {tmp}")
    k(f"v_max_f32 {tmp}, {S[0][15]}, {tmp}")
    k(f"v_mov_b32 {tmp2}, {tmp}")
    k.nop(2)
    k(f"v_permlane32_swap_b32 {tmp}, {tmp2}")
    k.nop(2)
    k(f"v_max_f32 {tmp}, {tmp}, {tmp2}")
    for i in range(16): k(f"v_sub_f32 {C[i]}, 0, {tmp}")
    k.nop(2)
    k(f"{MF} {S[0]}, {Kf[0]}, {Q}, {C}")
    k.nop(10)
    sph = k.s()
    k(f"s_mov_b32 {sph}, 0")
    stp.stamp(2, True); stp.stamp(4)
    loop = k.newlabel("loop")
    k(".p2align 6")
    k.label(loop)
    for t in range(8):
        cur, nxt = t & 1, (t & 1) ^ 1
        if t == 6:
            k("s_waitcnt vmcnt(2)")
            k("s_barrier")
        k("s_waitcnt lgkmcnt(0)")
        k(f"{MF} {S[nxt]}, {Kf[nxt]}, {Q}, {C}")
        def rd():
            tk = t + 2
            if tk < 8: k(f"ds_read_b128 {Kf[cur]}, {ak} offset:{tk*2048}")
            else: k(f"ds_read_b128 {Kf[cur]}, {akn} offset:{(tk-8)*2048}")
            k(f"s_mov_b64 exec, {vmask}")
            k(f"ds_read_b128 {Vf[cur][0:4]}, {av} offset:{t*2048}")
            k(f"ds_read_b128 {Vf[cur][4:8]}, {av} offset:{t*2048+512}")
            k("s_mov_b64 exec, -1")
        for i in range(16):
            if not variant & 4: k(f"v_exp_f32 {S[cur][i]}, {S[cur][i]}")
            else: k(f"v_mov_b32 {S[cur][i]}, {S[cur][i]}"); k(f"v_mov_b32 {S[cur][i]}, {S[cur][i]}")
            if i == 1: rd()
            if i == 4 and not variant & 2: k(f"{MF} {O}, {Vf[nxt][0:4]}, {P[nxt][0:4]}, {O}")
            if i == 9 and not variant & 2: k(f"{MF} {O}, {Vf[nxt][4:8]}, {P[nxt][4:8]}, {O}")
            if i % 2 == 1 and i >= 3:
                j = (i - 3) // 2
                k(f"v_cvt_pk_bf16_f32 {P[cur][j]}, {S[cur][2*j]}, {S[cur][2*j+1]}")
            if t == 6 and i == 12:
                k(f"s_and_b32 {slds}, {sgo}, 0xffff")
                k(f"s_and_b32 {st}, {sgo}, 0x1ffff")
                dma(st, slds)
                k(f"s_add_u32 {sgo}, {sgo}, 16384")
        if t == 7:
            k(f"v_mov_b32 {ak}, {akn}")
            k(f"v_mov_b32 {av}, {avn}")
            k(f"v_cvt_pk_bf16_f32 {P[cur][7]}, {S[cur][14]}, {S[cur][15]}")
            k(f"v_add_u32 {akn}, 16384, {akn}")
            k(f"v_add_u32 {avn}, 16384, {avn}")
            k(f"v_and_b32 {akn}, 0xffff, {akn}")
            k(f"v_and_b32 {avn}, 0xffff, {avn}")
        else:
            k.nop(1)
            k(f"v_cvt_pk_bf16_f32 {P[cur][7]}, {S[cur][14]}, {S[cur][15]}")
    k(f"s_add_u32 {sph}, {sph}, 1")
    k(f"s_cmp_lt_u32 {sph}, 8")
    k(f"s_cbranch_scc1 {loop}")
    stp.stamp(3, True); stp.stamp(5)
    k("s_waitcnt lgkmcnt(0)")
    k(f"{MF} {O}, {Vf[1][0:4]}, {P[1][0:4]}, {O}")
    k(f"{MF} {O}, {Vf[1][4:8]}, {P[1][4:8]}, {O}")
    k.nop(16)
    k(f"v_max3_f32 {tmp}, |{O[0]}|, |{O[1]}|, |{O[2]}|")
    k(f"v_max3_f32 {tmp}, |{O[3]}|, |{O[4]}|, {tmp}")
    k(f"v_max3_f32 {tmp}, |{O[5]}|, |{O[6]}|, {tmp}")
    k(f"v_max_f32 {tmp}, |{O[7]}|, {tmp}")
    sc1 = k.s(2); sct = k.s()
    k(f"v_mov_b32 {tmp2}, 0x7f800000")
    k(f"v_cmp_nlt_f32 vcc, {tmp}, {tmp2}")
    k(f"v_mov_b32 {tmp2}, 0x5f800000")
    k(f"v_cmp_nle_f32 {sc1}, {O[8]}, {tmp2}")
    k.nop(4)
    k(f"s_or_b64 vcc, vcc, {sc1}")
    fb = k.newlabel("fb"); fin = k.newlabel("fin")
    k(f"s_cbranch_scc1 {fb}")
    k.label(fin)
    k(f"v_rcp_f32 {tmp}, {O[8]}")
    k.nop(1)
    for i in range(8): k(f"v_mul_f32 {O[i]}, {O[i]}, {tmp}")
    for i in range(4): k(f"v_cvt_pk_bf16_f32 {P[0][i]}, {O[2*i]}, {O[2*i+1]}")
    k(f"buffer_store_dwordx4 {P[0][0:4]}, {l16}, {osrd}, {sq} offen")
    if stamps:
        k("s_waitcnt vmcnt(0)")
        k("s_barrier")
        stp.stamp(1)
        stp.flush(ws, tmp, tmp2)
    k.label(lend)
    k("s_endpgm")
    k.label(fb)
    R = dict(Q=Q, C=C, O=O, S=S, P=P, Kf=Kf, Vf=Vf, gk=l16, gv=gv, tmp=tmp, tmp2=tmp2, sct=sct, vmask=vmask)
    k("s_waitcnt vmcnt(0)")
    emit_attn_fallback(k, R, kvsrd, lane, fin)
    return k

if __name__ == "__main__":
    import sys
    for var in [int(x) for x in sys.argv[1:]] or [0]:
        k = attn_kernel("attn_kernel", stamps=6, variant=var)
        errs = check_hazards(k.lines, k.name)
        t = module_text("; attention test\n", [k], [(k.name, 256, 512, 65536 + 32768)])
        open(f"t_attn{var}.s", "w").write(t)
        print("vgprs", k.vhigh, "sgprs", k.shigh, "hazards", len(errs))
```

```python
S, D, H, DH, F = 2048, 512, 32, 16, 1792
QF  = 0x000000
OF  = 0x200000
GF  = 0x400000
KVF = 0x600000
HF  = 0x800000
WS_BYTES = 268435456
QSCALE = 0.25 * 1.4426950408889634
def kslot(hh, j): return 8 * (j >> 2) + 4 * hh + (j & 3)
STAMP = 0x1800000
```

```python
from asm import *
import layout as L
import struct
def fbits(x): return "0x%08x" % struct.unpack("<I", struct.pack("<f", x))[0]
MF16 = "v_mfma_f32_16x16x32_bf16"
C0 = -2.0 * 0.7978845608028654 * 1.4426950408889634
C1 = C0 * 0.044715
SLOT = 24576
XO, GO, UO, QO = 0, 8192, 15360, 22528
KVW = 4 * SLOT
ROWC = 0
CSO = ROWC + 2048
P1_LDS = KVW + 16384

def emit_map(k, srb, scg, tmp, mode="8x4"):
    if mode == "8x4":
        k(f"s_and_b32 {srb}, s2, 1"); k(f"s_lshl_b32 {srb}, {srb}, 3")
        k(f"s_bfe_u32 {tmp}, s2, 0x30003"); k(f"s_add_u32 {srb}, {srb}, {tmp}")
        k(f"s_bfe_u32 {scg}, s2, 0x20001"); k(f"s_lshl_b32 {scg}, {scg}, 2")
        k(f"s_lshr_b32 {tmp}, s2, 6"); k(f"s_add_u32 {scg}, {scg}, {tmp}")
    elif mode == "4x8":
        k(f"s_and_b32 {srb}, s2, 3"); k(f"s_lshl_b32 {srb}, {srb}, 2")
        k(f"s_bfe_u32 {tmp}, s2, 0x20003"); k(f"s_add_u32 {srb}, {srb}, {tmp}")
        k(f"s_bfe_u32 {scg}, s2, 0x10002"); k(f"s_lshl_b32 {scg}, {scg}, 3")
        k(f"s_lshr_b32 {tmp}, s2, 5"); k(f"s_add_u32 {scg}, {scg}, {tmp}")
    elif mode == "2x16":
        k(f"s_and_b32 {srb}, s2, 7"); k(f"s_lshl_b32 {srb}, {srb}, 1")
        k(f"s_bfe_u32 {tmp}, s2, 0x10003"); k(f"s_add_u32 {srb}, {srb}, {tmp}")
        k(f"s_lshr_b32 {scg}, s2, 4")
    else:
        k(f"s_lshr_b32 {srb}, s2, 4"); k(f"s_and_b32 {scg}, s2, 15")

def red_kg(k, v, t):
    k(f"v_mov_b32 {t}, {v}"); k.nop(2)
    k(f"v_permlane32_swap_b32 {v}, {t}"); k.nop(2)
    k(f"v_add_f32 {v}, {v}, {t}")
    k(f"v_mov_b32 {t}, {v}"); k.nop(2)
    k(f"v_permlane16_swap_b32 {v}, {t}"); k.nop(2)
    k(f"v_add_f32 {v}, {v}, {t}")

def p1_kernel(name, stamps=0, kidx=0, mapmode="8x4", var=0):
    k = Kernel(name, 256, 512, P1_LDS)
    lend = k.newlabel("end")
    k("s_cmp_ge_u32 s2, 256")
    k(f"s_cbranch_scc1 {lend}")
    px = k.s(2); pq = k.s(2); pk = k.s(2); pv = k.s(2); pg = k.s(4); ws = k.s(2)
    assert pq.base == px.base + 2 and pk.base == px.base + 4 and px.base % 4 == 0
    k(f"s_load_dwordx8 s[{px.base}:{px.base+7}], s[0:1], 0")
    k(f"s_load_dwordx4 {pg}, s[0:1], 48")
    k(f"s_load_dwordx2 {ws}, s[0:1], 88")
    stp = Stamper(k, kidx, stamps)
    stp.stamp(0)
    lane = k.v(); t0 = k.v(); t1 = k.v(); t2 = k.v(); t3 = k.v()
    sw = k.s(); sa = k.s(); sb = k.s(); srb = k.s(); scg = k.s(); st = k.s(); st2 = k.s()
    k(f"v_lshrrev_b32 {t0}, 6, v0")
    k(f"v_and_b32 {lane}, 63, v0")
    k(f"v_readfirstlane_b32 {sw}, {t0}")
    emit_map(k, srb, scg, st, mapmode)
    k(f"s_lshr_b32 {sa}, {sw}, 2")
    k(f"s_and_b32 {sb}, {sw}, 3")
    vA = k.v(); vB = k.v(); vC = k.v(); vKV = k.v()
    k(f"v_lshrrev_b32 {t0}, 2, {lane}")
    k(f"v_lshlrev_b32 {vA}, 10, {t0}")
    k(f"v_lshrrev_b32 {t1}, 4, {lane}")
    k(f"v_and_b32 {t1}, 2, {t1}")
    k(f"v_and_b32 {t2}, 3, {lane}")
    k(f"v_xor_b32 {t1}, {t1}, {t2}")
    k(f"v_lshl_add_u32 {vA}, {t1}, 4, {vA}")
    def swap23(dst, src, ta, tb):
        k(f"v_and_b32 {dst}, 0x13, {src}")
        k(f"v_and_b32 {ta}, 4, {src}")
        k(f"v_lshl_or_b32 {dst}, {ta}, 1, {dst}")
        k(f"v_and_b32 {ta}, 8, {src}")
        k(f"v_lshrrev_b32 {ta}, 1, {ta}")
        k(f"v_or_b32 {dst}, {ta}, {dst}")
    k(f"s_lshl_b32 {st}, {sw}, 6")
    k(f"v_add_u32 {t0}, {st}, {lane}")
    k(f"v_mul_u32_u24 {t1}, 4682, {t0}")
    k(f"v_lshrrev_b32 {t1}, 16, {t1}")
    k(f"v_mul_u32_u24 {t2}, 14, {t1}")
    k(f"v_sub_u32 {t0}, {t0}, {t2}")
    swap23(t2, t1, t3, None)
    k(f"v_mul_u32_u24 {vB}, 3584, {t2}")
    k(f"v_lshl_add_u32 {vB}, {t0}, 4, {vB}")
    k(f"v_mov_b32 {vC}, {vB}")
    lq = k.newlabel("notq")
    k(f"s_cmp_lg_u32 {sw}, 7")
    k(f"s_cbranch_scc1 {lq}")
    k(f"v_lshrrev_b32 {t1}, 2, {lane}")
    swap23(t2, t1, t3, None)
    k(f"v_lshlrev_b32 {vB}, 10, {t2}")
    k(f"v_lshrrev_b32 {t0}, 3, {lane}")
    k(f"v_and_b32 {t0}, 2, {t0}")
    k(f"v_and_b32 {t1}, 3, {lane}")
    k(f"v_xor_b32 {t0}, {t0}, {t1}")
    k(f"v_lshl_add_u32 {vB}, {t0}, 4, {vB}")
    k(f"v_add_u32 {vC}, 16384, {vB}")
    k.label(lq)
    k(f"v_lshrrev_b32 {t1}, 1, {lane}")
    swap23(t2, t1, t3, None)
    k(f"v_lshlrev_b32 {vKV}, 5, {t2}")
    k(f"v_and_b32 {t0}, 1, {lane}")
    k(f"v_lshl_add_u32 {vKV}, {t0}, 4, {vKV}")
    k("s_waitcnt lgkmcnt(0)")
    xsrd = k.srd(px, 2048 * 1024)
    srdB = k.s(4); srdC = k.s(4); srdK = k.s(4)
    sAo = k.s(); sBo = k.s(); sBinc = k.s(); sldA = k.s(); sldB = k.s(); sldC = k.s()
    k(f"s_mov_b32 {srdB[2]}, {512*3584}")
    k(f"s_mov_b32 {sBinc}, {32*3584}")
    k(f"s_mov_b32 {sldB}, {GO}")
    k(f"s_mov_b32 {sldC}, {UO}")
    k(f"s_cmp_eq_u32 {sw}, 7")
    k(f"s_cselect_b64 {srdB[0:2]}, {pq}, {pg[0:2]}")
    k(f"s_cselect_b64 {srdC[0:2]}, {pq}, {pg[2:4]}")
    k(f"s_cselect_b32 {srdB[2]}, {512*1024}, {srdB[2]}")
    k(f"s_cselect_b32 {sBinc}, 32768, {sBinc}")
    k(f"s_cselect_b32 {st}, 64, 224")
    k(f"s_cselect_b32 {sldB}, {QO - 7*1024}, {sldB}")
    k(f"s_cselect_b32 {sldC}, {QO + 1024 - 7*1024}, {sldC}")
    k(f"s_and_b32 {srdB[1]}, {srdB[1]}, 0xffff")
    k(f"s_and_b32 {srdC[1]}, {srdC[1]}, 0xffff")
    k(f"s_mov_b32 {srdC[2]}, {srdB[2]}")
    k(f"s_mov_b32 {srdB[3]}, 0x20000")
    k(f"s_mov_b32 {srdC[3]}, 0x20000")
    k(f"s_mul_i32 {sBo}, {scg}, {st}")
    k(f"s_lshl_b32 {sldA}, {sw}, 10")
    k(f"s_add_u32 {sldB}, {sldB}, {sldA}")
    k(f"s_add_u32 {sldC}, {sldC}, {sldA}")
    k(f"s_lshl_b32 {sAo}, {srb}, 17")
    k(f"s_lshl_b32 {st}, {sw}, 14")
    k(f"s_add_u32 {sAo}, {sAo}, {st}")
    k(f"s_bitcmp1_b32 {scg}, 0")
    k(f"s_cselect_b64 {srdK[0:2]}, {pv}, {pk}")
    k(f"s_and_b32 {srdK[1]}, {srdK[1]}, 0xffff")
    k(f"s_mov_b32 {srdK[2]}, 16384")
    k(f"s_mov_b32 {srdK[3]}, 0x20000")
    def dma_stage(slot):
        k(f"s_add_u32 m0, {sldA}, {slot*SLOT}"); k.nop(1)
        k(f"buffer_load_dwordx4 {vA}, {xsrd}, {sAo} offen lds")
        k(f"s_add_u32 m0, {sldB}, {slot*SLOT}"); k(f"s_add_u32 {sAo}, {sAo}, 64")
        k(f"buffer_load_dwordx4 {vB}, {srdB}, {sBo} offen lds")
        k(f"s_add_u32 m0, {sldC}, {slot*SLOT}"); k.nop(1)
        k(f"buffer_load_dwordx4 {vC}, {srdC}, {sBo} offen lds")
        k(f"s_add_u32 {sBo}, {sBo}, {sBinc}")
    dma_stage(0)
    k(f"s_lshl_b32 {st}, {sw}, 11")
    k(f"s_add_u32 m0, {st}, {KVW}"); k.nop(1)
    k(f"buffer_load_dwordx4 {vKV}, {srdK}, {st} offen lds")
    k(f"buffer_load_dwordx4 {vKV}, {srdK}, {st} offen offset:1024 lds")
    for s in range(1, 4): dma_stage(s)
    aX = [[k.v() for _ in range(4)] for _ in range(2)]
    aW0 = [k.v() for _ in range(2)]
    aW1 = [[k.v() for _ in range(4)] for _ in range(2)]
    aKx = [k.v() for _ in range(2)]; aKw = k.v()
    r16 = k.v(); kg = k.v(); irow = k.v(); cq8 = k.v()
    k(f"v_and_b32 {r16}, 15, {lane}")
    k(f"v_lshrrev_b32 {kg}, 4, {lane}")
    k(f"v_lshrrev_b32 {t0}, 2, {r16}")
    k(f"v_and_b32 {t0}, 2, {t0}")
    k(f"v_xor_b32 {t0}, {t0}, {kg}")
    k(f"v_lshlrev_b32 {t0}, 4, {t0}")
    k(f"v_lshl_add_u32 {t0}, {r16}, 6, {t0}")
    stile = [k.s() for _ in range(4)]
    for i in range(4):
        k(f"s_add_u32 {st}, {sb}, {i}"); k(f"s_and_b32 {st}, {st}, 3")
        k(f"s_lshl_b32 {st2}, {sa}, 2"); k(f"s_add_u32 {stile[i]}, {st}, {st2}")
        k(f"s_lshl_b32 {st}, {stile[i]}, 10")
        k(f"v_add_u32 {aX[0][i]}, {st}, {t0}")
        k(f"v_add_u32 {aX[1][i]}, {2*SLOT}, {aX[0][i]}")
    k(f"s_lshr_b32 {st}, {scg}, 1"); k(f"s_lshl_b32 {st}, {st}, 10")
    k(f"v_add_u32 {aKx[0]}, {st}, {t0}")
    k(f"v_add_u32 {aKx[1]}, {2*SLOT}, {aKx[0]}")
    k(f"v_lshrrev_b32 {t0}, 1, {kg}"); k(f"v_lshlrev_b32 {irow}, 4, {t0}")
    k(f"v_and_b32 {t0}, 1, {kg}"); k(f"v_lshl_add_u32 {irow}, {t0}, 2, {irow}")
    k(f"v_lshrrev_b32 {t1}, 2, {r16}"); k(f"v_add_u32 {irow}, {irow}, {t1}")
    k(f"v_and_b32 {cq8}, 3, {lane}"); k(f"v_lshlrev_b32 {cq8}, 3, {cq8}")
    sp0 = k.s(); sp1 = k.s()
    k(f"s_lshl_b32 {st}, {sb}, 1")
    k(f"s_add_u32 {sp0}, {st}, {sa}")
    k(f"s_xor_b32 {sp1}, {sp0}, 1")
    k(f"s_cmp_eq_u32 {sb}, 3")
    k(f"s_cselect_b32 {sp0}, 6, {sp0}")
    k(f"s_cselect_b32 {sp1}, 7, {sp1}")
    k(f"v_mul_u32_u24 {t1}, 224, {irow}")
    k(f"v_add_u32 {t1}, {t1}, {cq8}")
    k(f"v_add_u32 {t1}, {GO}, {t1}")
    k(f"s_lshl_b32 {st}, {sp0}, 5")
    k(f"v_add_u32 {aW0[0]}, {st}, {t1}")
    k(f"v_add_u32 {aW0[1]}, {2*SLOT}, {aW0[0]}")
    k(f"s_lshl_b32 {st}, {sp1}, 5")
    k(f"v_add_u32 {aW1[0][0]}, {st}, {t1}")
    k(f"v_add_u32 {aW1[0][1]}, 1792, {aW1[0][0]}")
    k(f"v_add_u32 {aW1[0][2]}, 7168, {aW1[0][0]}")
    k(f"v_add_u32 {aW1[0][3]}, 8960, {aW1[0][0]}")
    lq2 = k.newlabel("notq2")
    k(f"s_cmp_lg_u32 {sb}, 3")
    k(f"s_cbranch_scc1 {lq2}")
    k(f"v_lshl_add_u32 {t1}, {irow}, 6, {cq8}")
    k(f"v_add_u32 {t1}, {QO}, {t1}")
    k(f"v_lshl_add_u32 {aW1[0][0]}, {t0}, 5, {t1}")
    k(f"v_add_u32 {aW1[0][1]}, 512, {aW1[0][0]}")
    k(f"v_xor_b32 {aW1[0][2]}, 32, {aW1[0][0]}")
    k(f"v_add_u32 {aW1[0][3]}, 512, {aW1[0][2]}")
    k.label(lq2)
    for j in range(4): k(f"v_add_u32 {aW1[1][j]}, {2*SLOT}, {aW1[0][j]}")
    k(f"v_lshl_add_u32 {aKw}, {irow}, 5, {cq8}")
    k(f"v_add_u32 {aKw}, {KVW}, {aKw}")
    acc = [[k.v(4) for T in range(4)] for i in range(4)]
    fX = [[k.v(4) for i in range(4)] for _ in range(2)]
    fW = [[k.v(4) for T in range(4)] for _ in range(2)]
    kvx = k.v(4); kvw = k.v(4); kvacc = k.v(4)
    ssum = k.v(4); ssq = k.v(4); cs = [k.v(4) for _ in range(4)]; cskv = k.v(4); ones = k.v(4)
    for i in range(4):
        for T in range(4):
            for r in range(4): k(f"v_mov_b32 {acc[i][T][r]}, 0")
    for r in range(4): k(f"v_mov_b32 {kvacc[r]}, 0")
    for v_ in [ssum, ssq, cskv] + cs:
        for r in range(4): k(f"v_mov_b32 {v_[r]}, 0")
    for r in range(4): k(f"v_mov_b32 {ones[r]}, 0x3f803f80")
    srole = k.s()
    k(f"s_and_b32 {srole}, {scg}, 1"); k(f"s_add_u32 {srole}, {srole}, 1")
    k(f"s_cmp_eq_u32 {sw}, 7"); k(f"s_cselect_b32 {srole}, {srole}, 0")
    def reads(slot, fb):
        h = slot >> 1; o = (slot & 1) * SLOT
        R = []
        for i in range(4): R.append(f"ds_read_b128 {fX[fb][i]}, {aX[h][i]} offset:{o}")
        W = []
        W.append(f"ds_read_b64_tr_b16 {fW[fb][0][0:2]}, {aW0[h]} offset:{o}")
        W.append(f"ds_read_b64_tr_b16 {fW[fb][0][2:4]}, {aW0[h]} offset:{o+1792}")
        W.append(f"ds_read_b64_tr_b16 {fW[fb][1][0:2]}, {aW0[h]} offset:{o+7168}")
        W.append(f"ds_read_b64_tr_b16 {fW[fb][1][2:4]}, {aW0[h]} offset:{o+8960}")
        W.append(f"ds_read_b64_tr_b16 {fW[fb][2][0:2]}, {aW1[h][0]} offset:{o}")
        W.append(f"ds_read_b64_tr_b16 {fW[fb][2][2:4]}, {aW1[h][1]} offset:{o}")
        W.append(f"ds_read_b64_tr_b16 {fW[fb][3][0:2]}, {aW1[h][2]} offset:{o}")
        W.append(f"ds_read_b64_tr_b16 {fW[fb][3][2:4]}, {aW1[h][3]} offset:{o}")
        return [R[0], W[0], W[1], R[1], W[2], W[3], R[2], W[4], W[5], R[3], W[6], W[7]]
    def kv_reads(slot, u):
        h = slot >> 1; o = (slot & 1) * SLOT
        k(f"ds_read_b128 {kvx}, {aKx[h]} offset:{o}")
        k(f"ds_read_b64_tr_b16 {kvw[0:2]}, {aKw} offset:{u*1024}")
        k(f"ds_read_b64_tr_b16 {kvw[2:4]}, {aKw} offset:{u*1024+256}")
    k("s_waitcnt vmcnt(9)")
    k("s_barrier")
    stp.stamp(2)
    for r in reads(0, 0): k(r)
    kv_reads(0, 0)
    side = []
    def stage(u, vm, do_dma, do_read):
        fb = u & 1
        k(f"s_waitcnt vmcnt({vm}) lgkmcnt(0)" if vm is not None else "s_waitcnt lgkmcnt(0)")
        if do_read: k("s_barrier")
        R = reads((u + 1) % 4, fb ^ 1) if do_read else []
        D = {3: f"{MF16} {ssum}, {ones}, {fX[fb][0]}, {ssum}",
             7: f"{MF16} {ssq}, {fX[fb][0]}, {fX[fb][0]}, {ssq}",
             11: f"{MF16} {cs[0]}, {fW[fb][0]}, {ones}, {cs[0]}",
             15: f"{MF16} {cs[1]}, {fW[fb][1]}, {ones}, {cs[1]}"}
        j = 0
        for i in range(4):
            for T in range(4):
                if not var & 4: k(f"{MF16} {acc[i][T]}, {fW[fb][T]}, {fX[fb][i]}, {acc[i][T]}")
                if j < len(R) and not var & 8: k(R[j])
                if not var & 2 and j in D: k(D[j])
                if j == 1 and do_dma and not var & 1: dma_stage(u)
                if j == 13:
                    ls = k.newlabel("side"); lb = k.newlabel("back")
                    k(f"s_cmp_lg_u32 {srole}, 0")
                    k(f"s_cbranch_scc1 {ls}")
                    k.label(lb)
                    side.append((ls, lb, u, fb, do_read))
                j += 1
    sit = k.s()
    k(f"s_mov_b32 {sit}, 0")
    loop = k.newlabel("loop")
    k(".p2align 6")
    k.label(loop)
    for u in range(4): stage(u, 6, True, True)
    k(f"s_add_u32 {sit}, {sit}, 1")
    k(f"v_add_u32 {aKw}, 4096, {aKw}")
    k(f"s_cmp_lt_u32 {sit}, 3")
    k(f"s_cbranch_scc1 {loop}")
    stage(0, 6, False, True); stage(1, 3, False, True); stage(2, 0, False, True); stage(3, None, False, False)
    stp.stamp(3)
    k.nop(8)
    rc = k.v(4)
    r16x16 = k.v(); kg16 = k.v()
    k(f"v_lshlrev_b32 {r16x16}, 4, {r16}")
    k(f"v_lshlrev_b32 {kg16}, 4, {kg}")
    k(f"v_and_b32 {t1}, 3, {r16}")
    k(f"v_cmp_eq_u32 vcc, 1, {t1}"); k.nop(2)
    k(f"v_cndmask_b32 {t0}, {ssq[0]}, {ssq[1]}, vcc")
    k(f"v_cmp_eq_u32 vcc, 2, {t1}"); k.nop(2)
    k(f"v_cndmask_b32 {t0}, {t0}, {ssq[2]}, vcc")
    k(f"v_cmp_eq_u32 vcc, 3, {t1}"); k.nop(2)
    k(f"v_cndmask_b32 {t0}, {t0}, {ssq[3]}, vcc")
    k(f"v_mul_f32 {rc[0]}, {fbits(-1.0/512)}, {ssum[0]}")
    k(f"v_mul_f32 {t0}, {fbits(1.0/512)}, {t0}")
    k(f"v_fma_f32 {t0}, -{rc[0]}, {rc[0]}, {t0}")
    k(f"v_max_f32 {t0}, 0, {t0}")
    k(f"v_add_f32 {rc[3]}, {fbits(1e-5)}, {t0}")
    k(f"v_rsq_f32 {t1}, {rc[3]}")
    k(f"v_lshrrev_b32 {t3}, 2, {r16}")
    k(f"v_mul_f32 {rc[1]}, {fbits(C0)}, {t1}")
    k(f"v_mul_f32 {t2}, {t1}, {t1}")
    k(f"v_mul_f32 {t2}, {t2}, {t1}")
    k(f"v_mul_f32 {rc[2]}, {fbits(C1)}, {t2}")
    k(f"s_lshl_b32 {st}, {stile[0]}, 8")
    k(f"v_add_u32 {t0}, {st}, {r16x16}")
    k(f"v_cmp_eq_u32 vcc, {t3}, {kg}")
    sv = k.s(2)
    k(f"s_and_saveexec_b64 {sv}, vcc")
    k(f"ds_write_b128 {t0}, {rc} offset:{ROWC}")
    k(f"s_mov_b64 exec, {sv}")
    k(f"s_lshl_b32 {st}, {sp0}, 7")
    k(f"v_add_u32 {t0}, {st}, {kg16}")
    k(f"v_cmp_eq_u32 vcc, 0, {r16}")
    k(f"s_and_saveexec_b64 {sv}, vcc")
    k(f"ds_write_b128 {t0}, {cs[0]} offset:{CSO}")
    k(f"ds_write_b128 {t0}, {cs[1]} offset:{CSO+64}")
    lnr = k.newlabel("norole")
    k(f"s_cmp_eq_u32 {srole}, 0")
    k(f"s_cbranch_scc1 {lnr}")
    k(f"ds_write_b128 {kg16}, {cs[2]} offset:{CSO + 14*64}")
    k(f"ds_write_b128 {kg16}, {cs[3]} offset:{CSO + 15*64}")
    k.label(lnr)
    k(f"s_mov_b64 exec, {sv}")
    k("s_waitcnt lgkmcnt(0)")
    k("s_barrier")
    RC = fX[0]
    CS = fW[0]
    for i in range(4):
        k(f"s_lshl_b32 {st}, {stile[i]}, 8")
        k(f"v_add_u32 {t0}, {st}, {r16x16}")
        k(f"ds_read_b128 {RC[i]}, {t0} offset:{ROWC}")
    k(f"s_lshl_b32 {st}, {sp0}, 7")
    k(f"v_add_u32 {t0}, {st}, {kg16}")
    k(f"ds_read_b128 {CS[0]}, {t0} offset:{CSO}")
    k(f"ds_read_b128 {CS[1]}, {t0} offset:{CSO+64}")
    k(f"s_lshl_b32 {st}, {sp1}, 7")
    k(f"v_add_u32 {t0}, {st}, {kg16}")
    k(f"ds_read_b128 {CS[2]}, {t0} offset:{CSO}")
    k(f"ds_read_b128 {CS[3]}, {t0} offset:{CSO+64}")
    hsrd = k.srd(ws, 64 * 112 * 1024, L.HF)
    qsrd = k.srd(ws, 0x200000, L.QF)
    kvsrd = k.srd(ws, 0x20000, L.KVF)
    vst = k.v()
    k(f"v_and_b32 {t0}, 1, {kg}"); k(f"v_lshl_add_u32 {vst}, {t0}, 9, {r16x16}")
    k(f"v_lshrrev_b32 {t0}, 1, {kg}"); k(f"v_lshl_add_u32 {vst}, {t0}, 3, {vst}")
    srt = [k.s() for _ in range(4)]
    sodd = [k.s() for _ in range(4)]
    for i in range(4):
        k(f"s_lshr_b32 {srt[i]}, {stile[i]}, 1"); k(f"s_lshl_b32 {st}, {srb}, 2"); k(f"s_add_u32 {srt[i]}, {srt[i]}, {st}")
        k(f"s_and_b32 {sodd[i]}, {stile[i]}, 1"); k(f"s_lshl_b32 {sodd[i]}, {sodd[i]}, 8")
    sfs = k.s(); so = k.s()
    k("s_waitcnt lgkmcnt(0)")
    tm = [fX[1][j//2][2*(j&1):2*(j&1)+2] for j in range(6)]
    outp = [fX[1][3][0:2], fX[1][3][2:4]]
    def geglu(lp, sp):
        k(f"s_mul_i32 {sfs}, {scg}, 7"); k(f"s_add_u32 {sfs}, {sfs}, {sp}")
        for i in range(4):
            G = acc[i][2*lp]; U = acc[i][2*lp+1]; rcv = RC[i]; o = outp[i & 1]
            for hlf in range(2):
                g = G[2*hlf:2*hlf+2]; u = U[2*hlf:2*hlf+2]
                w_, z_ = tm[3*hlf], tm[3*hlf+1]
                k(f"v_pk_fma_f32 {g}, {CS[2*lp][2*hlf:2*hlf+2]}, {rcv[0:2]}, {g} op_sel_hi:[1,0,1]")
                k(f"v_pk_fma_f32 {u}, {CS[2*lp+1][2*hlf:2*hlf+2]}, {rcv[0:2]}, {u} op_sel_hi:[1,0,1]")
                k(f"v_pk_mul_f32 {w_}, {g}, {g}")
                k(f"v_pk_fma_f32 {w_}, {w_}, {rcv[2:4]}, {rcv[0:2]} op_sel:[0,0,1] op_sel_hi:[1,0,1]")
                k(f"v_pk_mul_f32 {z_}, {w_}, {g}")
                k(f"v_pk_mul_f32 {u}, {u}, {g}")
                k(f"v_exp_f32 {z_[0]}, {z_[0]}")
                k(f"v_exp_f32 {z_[1]}, {z_[1]}")
            for hlf in range(2):
                z_ = tm[3*hlf+1]
                k(f"v_pk_fma_f32 {z_}, {z_}, {rcv[2:4]}, {rcv[2:4]} op_sel:[0,1,1] op_sel_hi:[1,1,1]")
                k(f"v_rcp_f32 {z_[0]}, {z_[0]}")
                k(f"v_rcp_f32 {z_[1]}, {z_[1]}")
            k(f"s_mul_i32 {so}, {srt[i]}, 112"); k(f"s_add_u32 {so}, {so}, {sfs}")
            for hlf in range(2):
                u = U[2*hlf:2*hlf+2]; z_ = tm[3*hlf+1]
                k(f"v_pk_mul_f32 {u}, {u}, {z_}")
            k(f"s_lshl_b32 {so}, {so}, 10"); k(f"s_add_u32 {so}, {so}, {sodd[i]}")
            for hlf in range(2):
                k(f"v_cvt_pk_bf16_f32 {o[hlf]}, {U[2*hlf]}, {U[2*hlf+1]}")
            k(f"buffer_store_dwordx2 {o}, {vst}, {hsrd}, {so} offen")
    geglu(0, sp0)
    lqe = k.newlabel("qepi"); ldone = k.newlabel("done")
    k(f"s_cmp_eq_u32 {sb}, 3")
    k(f"s_cbranch_scc1 {lqe}")
    geglu(1, sp1)
    k(f"s_branch {ldone}")
    k.label(lqe)
    for i in range(4):
        rcv = RC[i]
        k(f"v_mul_f32 {tm[0][0]}, {fbits(L.QSCALE / C0)}, {rcv[1]}")
        for T in (2, 3):
            A = acc[i][T]; o = outp[T & 1]
            for hlf in range(2):
                g = A[2*hlf:2*hlf+2]
                k(f"v_pk_fma_f32 {g}, {CS[T][2*hlf:2*hlf+2]}, {rcv[0:2]}, {g} op_sel_hi:[1,0,1]")
                k(f"v_pk_mul_f32 {g}, {g}, {tm[0]} op_sel_hi:[1,0]")
            k(f"s_lshl_b32 {so}, {srt[i]}, 4"); k(f"s_add_u32 {so}, {so}, {scg}"); k(f"s_lshl_b32 {so}, {so}, 11")
            k(f"s_add_u32 {so}, {so}, {sodd[i]}")
            for hlf in range(2):
                k(f"v_cvt_pk_bf16_f32 {o[hlf]}, {A[2*hlf]}, {A[2*hlf+1]}")
            k(f"buffer_store_dwordx2 {o}, {vst}, {qsrd}, {so} offen offset:{(T-2)*1024}")
    k(f"s_cmp_eq_u32 {srole}, 0")
    k(f"s_cbranch_scc1 {ldone}")
    skt = k.s(); stt = k.s()
    k(f"s_lshr_b32 {stt}, {scg}, 1")
    k(f"s_lshr_b32 {skt}, {scg}, 2"); k(f"s_lshl_b32 {st}, {srb}, 2"); k(f"s_add_u32 {skt}, {skt}, {st}")
    k(f"s_lshl_b32 {skt}, {skt}, 11")
    lv = k.newlabel("vepi")
    k(f"s_cmp_eq_u32 {srole}, 2")
    k(f"s_cbranch_scc1 {lv}")
    k(f"s_lshl_b32 {st}, {stt}, 8")
    k(f"v_add_u32 {t0}, {st}, {r16x16}")
    k(f"ds_read_b128 {RC[0]}, {t0} offset:{ROWC}")
    k("s_waitcnt lgkmcnt(0)")
    k(f"v_mul_f32 {t1}, {fbits(1.0 / C0)}, {RC[0][1]}")
    for r in range(4):
        k(f"v_fma_f32 {kvacc[r]}, {cskv[r]}, {RC[0][0]}, {kvacc[r]}")
        k(f"v_mul_f32 {kvacc[r]}, {kvacc[r]}, {t1}")
    k(f"s_and_b32 {st}, {stt}, 1"); k(f"s_lshl_b32 {st}, {st}, 8"); k(f"s_add_u32 {skt}, {skt}, {st}")
    k(f"v_cvt_pk_bf16_f32 {outp[0][0]}, {kvacc[0]}, {kvacc[1]}")
    k(f"v_cvt_pk_bf16_f32 {outp[0][1]}, {kvacc[2]}, {kvacc[3]}")
    k(f"buffer_store_dwordx2 {outp[0]}, {vst}, {kvsrd}, {skt} offen")
    k(f"s_branch {ldone}")
    k.label(lv)
    k(f"s_lshl_b32 {st}, {stt}, 8")
    k(f"v_lshlrev_b32 {t0}, 6, {kg}")
    k(f"v_add_u32 {t0}, {st}, {t0}")
    for r in range(4): k(f"ds_read_b64 {RC[r][0:2]}, {t0} offset:{ROWC + 16*r}")
    k("s_waitcnt lgkmcnt(0)")
    for r in range(4):
        k(f"v_fma_f32 {kvacc[r]}, {cskv[0]}, {RC[r][0]}, {kvacc[r]}")
        k(f"v_mul_f32 {t1}, {fbits(1.0 / C0)}, {RC[r][1]}")
        k(f"v_mul_f32 {kvacc[r]}, {kvacc[r]}, {t1}")
    k(f"s_and_b32 {st}, {stt}, 1"); k(f"s_lshl_b32 {st}, {st}, 9"); k(f"s_add_u32 {skt}, {skt}, {st}")
    k(f"v_and_b32 {t0}, 1, {kg}"); k(f"v_lshl_add_u32 {t1}, {t0}, 8, {r16x16}")
    k(f"v_lshrrev_b32 {t0}, 1, {kg}"); k(f"v_lshl_add_u32 {t1}, {t0}, 3, {t1}")
    k(f"v_cvt_pk_bf16_f32 {outp[0][0]}, {kvacc[0]}, {kvacc[1]}")
    k(f"v_cvt_pk_bf16_f32 {outp[0][1]}, {kvacc[2]}, {kvacc[3]}")
    k(f"buffer_store_dwordx2 {outp[0]}, {t1}, {kvsrd}, {skt} offen offset:1024")
    k.label(ldone)
    if stamps:
        k("s_waitcnt vmcnt(0)")
        k("s_barrier")
        stp.stamp(1)
        stp.flush(ws, t0, t1)
    k.label(lend)
    k("s_endpgm")
    for (ls, lb, u, fb, do_read) in side:
        k.label(ls)
        lvv = k.newlabel("sv"); lj = k.newlabel("sj")
        k(f"s_cmp_eq_u32 {srole}, 2")
        k(f"s_cbranch_scc1 {lvv}")
        k(f"{MF16} {kvacc}, {kvw}, {kvx}, {kvacc}")
        k(f"{MF16} {cskv}, {kvw}, {ones}, {cskv}")
        k(f"s_branch {lj}")
        k.label(lvv)
        k(f"{MF16} {kvacc}, {kvx}, {kvw}, {kvacc}")
        k(f"{MF16} {cskv}, {ones}, {kvw}, {cskv}")
        k.label(lj)
        k(f"{MF16} {cs[2]}, {fW[fb][2]}, {ones}, {cs[2]}")
        k(f"{MF16} {cs[3]}, {fW[fb][3]}, {ones}, {cs[3]}")
        if do_read: kv_reads((u + 1) % 4, u + 1)
        k(f"s_branch {lb}")
    return k

if __name__ == "__main__":
    import sys
    for a in sys.argv[1:] or ["0"]:
        var, mm = (a.split(":") + ["8x4"])[:2]
        k = p1_kernel("p1_kernel", stamps=4, var=int(var), mapmode=mm)
        errs = check_hazards(k.lines, k.name)
        t = module_text("; p1 test\n", [k], [(k.name, 256, 512, P1_LDS)])
        open(f"t_p1_{var}_{mm}.s", "w").write(t)
        print("vgprs", k.vhigh, "sgprs", k.shigh, "hazards", len(errs), "lds", P1_LDS)
```

```python
from asm import *
import layout as L
from p1 import emit_map, fbits
from attn import emit_attn_fallback
MF = "v_mfma_f32_32x32x16_bf16"
KVRING = 0
WDRING = 65536
P2_LDS = WDRING + 3 * 16384

def p2_kernel(name, stamps=0, kidx=1, mapmode="8x4", var=0):
    k = Kernel(name, 256, 512, P2_LDS)
    lend = k.newlabel("end")
    k("s_cmp_ge_u32 s2, 256")
    k(f"s_cbranch_scc1 {lend}")
    ws = k.s(2); pd = k.s(2)
    k(f"s_load_dwordx2 {ws}, s[0:1], 88")
    k(f"s_load_dwordx2 {pd}, s[0:1], 64")
    stp = Stamper(k, kidx, stamps)
    stp.stamp(0)
    lane = k.v(); tmp = k.v(); tmp2 = k.v(); l16 = k.v()
    sw = k.s(); srb = k.s(); scg = k.s(); st = k.s(); st2 = k.s()
    k(f"v_lshrrev_b32 {tmp}, 6, v0")
    k(f"v_and_b32 {lane}, 63, v0")
    k(f"v_readfirstlane_b32 {sw}, {tmp}")
    k(f"v_lshlrev_b32 {l16}, 4, {lane}")
    emit_map(k, srb, scg, st, mapmode)
    srt = k.s(); skh = k.s(); sq = k.s()
    k(f"s_lshl_b32 {srt}, {srb}, 2"); k(f"s_and_b32 {st}, {sw}, 3"); k(f"s_add_u32 {srt}, {srt}, {st}")
    k(f"s_lshr_b32 {skh}, {sw}, 2")
    k(f"s_lshl_b32 {sq}, {srt}, 4"); k(f"s_add_u32 {sq}, {sq}, {scg}"); k(f"s_lshl_b32 {sq}, {sq}, 1")
    k(f"s_add_u32 {sq}, {sq}, {skh}"); k(f"s_lshl_b32 {sq}, {sq}, 10")
    vWd = k.v()
    k(f"v_lshrrev_b32 {tmp}, 2, {lane}"); k(f"v_lshlrev_b32 {vWd}, 10, {tmp}")
    k(f"v_and_b32 {tmp}, 3, {lane}"); k(f"v_lshl_add_u32 {vWd}, {tmp}, 4, {vWd}")
    k("s_waitcnt lgkmcnt(0)")
    qsrd = k.srd(ws, 0x200000, L.QF)
    kvsrd = k.srd(ws, 0x20000, L.KVF)
    hsrd = k.srd(ws, 64 * 112 * 1024, L.HF)
    dsrd = k.srd(pd, 1792 * 1024)
    Q = k.v(4); C = k.v(16); O = k.v(16); S = [k.v(16), k.v(16)]; P = [k.v(8), k.v(8)]
    Kf = [k.v(4), k.v(4)]; Vf = [k.v(8), k.v(8)]
    DA = k.v(16); Hf = [k.v(4) for _ in range(8)]; Wf = [k.v(4), k.v(4)]
    k(f"buffer_load_dwordx4 {Q}, {l16}, {qsrd}, {sq} offen")
    sgo = k.s(); slds = k.s(); sw2k = k.s()
    k(f"s_lshl_b32 {sw2k}, {sw}, 11")
    def dma_kv(goff_s, lds_s):
        k(f"s_mov_b32 m0, {lds_s}")
        k.nop(1)
        k(f"buffer_load_dwordx4 {l16}, {kvsrd}, {goff_s} offen lds")
        k(f"buffer_load_dwordx4 {l16}, {kvsrd}, {goff_s} offen offset:1024 lds")
    k(f"s_mov_b32 {sgo}, {sw2k}")
    for p in range(3):
        dma_kv(sgo, sgo)
        k(f"s_add_u32 {sgo}, {sgo}, 16384")
    sdo = k.s(); sdl = k.s()
    k(f"s_mul_i32 {sdo}, {skh}, 56"); k(f"s_and_b32 {st}, {sw}, 3"); k(f"s_lshl_b32 {st}, {st}, 1")
    k(f"s_add_u32 {sdo}, {sdo}, {st}"); k(f"s_lshl_b32 {sdo}, {sdo}, 14")
    k(f"s_lshl_b32 {st}, {scg}, 6"); k(f"s_add_u32 {sdo}, {sdo}, {st}")
    k(f"s_add_u32 {sdl}, {sw2k}, {WDRING}")
    def dma_wd():
        k(f"s_mov_b32 m0, {sdl}")
        k(f"s_add_u32 {st2}, {sdo}, {16384 - 1024}")
        k(f"buffer_load_dwordx4 {vWd}, {dsrd}, {sdo} offen lds")
        k(f"buffer_load_dwordx4 {vWd}, {dsrd}, {st2} offen offset:1024 lds")
        k(f"s_add_u32 {sdo}, {sdo}, {8 * 16384}")
        k(f"s_add_u32 {sdl}, {sdl}, 16384")
        k(f"s_cmp_ge_u32 {sdl}, {WDRING + 3 * 16384}")
        k(f"s_cselect_b32 {st2}, {3 * 16384}, 0")
        k(f"s_sub_u32 {sdl}, {sdl}, {st2}")
    dma_wd()
    sho = k.s()
    k(f"s_mul_i32 {sho}, {srt}, 112"); k(f"s_mul_i32 {st}, {skh}, 56"); k(f"s_add_u32 {sho}, {sho}, {st}")
    k(f"s_lshl_b32 {sho}, {sho}, 10")
    ak = k.v(); av = k.v(); akn = k.v(); avn = k.v(); gv = k.v(); aw = k.v(); awn = k.v()
    k(f"v_mov_b32 {ak}, {l16}")
    k(f"v_and_b32 {tmp}, 15, {lane}"); k(f"v_lshlrev_b32 {tmp}, 4, {tmp}")
    k(f"v_lshrrev_b32 {tmp2}, 5, {lane}"); k(f"v_lshlrev_b32 {tmp2}, 8, {tmp2}")
    k(f"v_add_u32 {av}, {tmp}, {tmp2}")
    k(f"v_add_u32 {av}, 1024, {av}")
    k(f"v_mov_b32 {gv}, {av}")
    k(f"v_add_u32 {akn}, 16384, {ak}")
    k(f"v_add_u32 {avn}, 16384, {av}")
    k(f"v_bfe_u32 {tmp}, {lane}, 2, 2"); k(f"v_lshlrev_b32 {aw}, 6, {tmp}")
    k(f"v_add_u32 {aw}, {aw}, {tmp2}")
    k(f"v_bfe_u32 {tmp}, {lane}, 4, 1"); k(f"v_lshl_add_u32 {aw}, {tmp}, 5, {aw}")
    k(f"v_and_b32 {tmp}, 3, {lane}"); k(f"v_lshl_add_u32 {aw}, {tmp}, 3, {aw}")
    k(f"s_lshl_b32 {st}, {skh}, 13"); k(f"s_add_u32 {st}, {st}, {WDRING}")
    k(f"v_add_u32 {awn}, {st}, {aw}")
    k(f"v_mov_b32 {aw}, {awn}")
    swn = k.s()
    k(f"s_mov_b32 {swn}, 0")
    vmask = k.s(2)
    k(f"s_mov_b32 {vmask[0]}, 0x0000ffff")
    k(f"s_mov_b32 {vmask[1]}, 0x0000ffff")
    ones = k.v()
    k(f"v_mov_b32 {ones}, 0x3f803f80")
    k(f"v_and_b32 {tmp}, 27, {lane}")
    k(f"v_cmp_eq_u32 vcc, 16, {tmp}")
    k.nop(2)
    k(f"v_cndmask_b32 {ones}, 0, {ones}, vcc")
    for b in range(2):
        for i in range(8):
            k(f"v_mov_b32 {Vf[b][i]}, {ones}")
            k(f"v_mov_b32 {P[b][i]}, 0")
    for i in range(16): k(f"v_mov_b32 {O[i]}, 0"); k(f"v_mov_b32 {DA[i]}, 0")
    k("s_waitcnt vmcnt(6)")
    k("s_barrier")
    k(f"ds_read_b128 {Kf[0]}, {ak}")
    k(f"ds_read_b128 {Kf[1]}, {ak} offset:2048")
    k("s_waitcnt lgkmcnt(1)")
    k(f"{MF} {S[0]}, {Kf[0]}, {Q}, 0")
    k.nop(16)
    k(f"v_max3_f32 {tmp}, {S[0][0]}, {S[0][1]}, {S[0][2]}")
    for i in range(3, 15, 2):
        k(f"v_max3_f32 {tmp}, {S[0][i]}, {S[0][i+1]}, {tmp}")
    k(f"v_max_f32 {tmp}, {S[0][15]}, {tmp}")
    k(f"v_mov_b32 {tmp2}, {tmp}")
    k.nop(2)
    k(f"v_permlane32_swap_b32 {tmp}, {tmp2}")
    k.nop(2)
    k(f"v_max_f32 {tmp}, {tmp}, {tmp2}")
    for i in range(16): k(f"v_sub_f32 {C[i]}, 0, {tmp}")
    k.nop(2)
    k(f"{MF} {S[0]}, {Kf[0]}, {Q}, {C}")
    k.nop(10)
    stp.stamp(2)
    def phase(first):
        for t in range(8):
            cur, nxt = t & 1, (t & 1) ^ 1
            if t == 6:
                k("s_waitcnt vmcnt(6)" if first else "s_waitcnt vmcnt(7)")
                k("s_barrier")
            k("s_waitcnt lgkmcnt(0)" if first else "s_waitcnt vmcnt(11) lgkmcnt(0)")
            k(f"{MF} {S[nxt]}, {Kf[nxt]}, {Q}, {C}")
            def rd():
                tk = t + 2
                if tk < 8: k(f"ds_read_b128 {Kf[cur]}, {ak} offset:{tk*2048}")
                else: k(f"ds_read_b128 {Kf[cur]}, {akn} offset:{(tk-8)*2048}")
                k(f"s_mov_b64 exec, {vmask}")
                k(f"ds_read_b128 {Vf[cur][0:4]}, {av} offset:{t*2048}")
                k(f"ds_read_b128 {Vf[cur][4:8]}, {av} offset:{t*2048+512}")
                k("s_mov_b64 exec, -1")
            def rdw():
                if t < 7:
                    if first: return
                    a_, o_ = aw, (t + 1) * 1024
                else: a_, o_ = awn, 0
                k(f"ds_read_b64_tr_b16 {Wf[nxt][0:2]}, {a_} offset:{o_}")
                k(f"ds_read_b64_tr_b16 {Wf[nxt][2:4]}, {a_} offset:{o_+512}")
            for i in range(16):
                k(f"v_exp_f32 {S[cur][i]}, {S[cur][i]}")
                if i == 1: rd()
                if i == 3: k(f"{MF} {O}, {Vf[nxt][0:4]}, {P[nxt][0:4]}, {O}")
                if i == 5: rdw()
                if i == 7: k(f"{MF} {O}, {Vf[nxt][4:8]}, {P[nxt][4:8]}, {O}")
                if i == 11 and not first and not var & 1: k(f"{MF} {DA}, {Wf[cur]}, {Hf[t]}, {DA}")
                if i % 2 == 1 and i >= 3:
                    j = (i - 3) // 2
                    k(f"v_cvt_pk_bf16_f32 {P[cur][j]}, {S[cur][2*j]}, {S[cur][2*j+1]}")
                if t == 6 and i == 12:
                    k(f"s_and_b32 {slds}, {sgo}, 0xffff")
                    k(f"s_and_b32 {st}, {sgo}, 0x1ffff")
                    dma_kv(st, slds)
                    k(f"s_add_u32 {sgo}, {sgo}, 16384")
                    dma_wd()
                if i == 13:
                    k(f"buffer_load_dwordx4 {Hf[t]}, {l16}, {hsrd}, {sho} offen offset:{(t & 3) * 1024}")
                    if t & 3 == 3: k(f"s_add_u32 {sho}, {sho}, 4096")
            if t == 7:
                k(f"v_mov_b32 {ak}, {akn}")
                k(f"v_cvt_pk_bf16_f32 {P[cur][7]}, {S[cur][14]}, {S[cur][15]}")
                k(f"v_mov_b32 {av}, {avn}")
                k(f"v_mov_b32 {aw}, {awn}")
                k(f"v_add_u32 {akn}, 16384, {akn}")
                k(f"v_add_u32 {avn}, 16384, {avn}")
                k(f"v_and_b32 {akn}, 0xffff, {akn}")
                k(f"v_and_b32 {avn}, 0xffff, {avn}")
                k(f"s_add_u32 {swn}, {swn}, 1")
                k(f"s_cmp_eq_u32 {swn}, 3")
                k(f"s_cselect_b32 {swn}, 0, {swn}")
                k(f"s_mov_b32 {st}, 16384")
                k(f"s_cselect_b32 {st}, {(-2 * 16384) & 0xffffffff}, {st}")
                k(f"v_add_u32 {awn}, {st}, {awn}")
            else:
                k.nop(1)
                k(f"v_cvt_pk_bf16_f32 {P[cur][7]}, {S[cur][14]}, {S[cur][15]}")
    phase(True)
    sph = k.s()
    k(f"s_mov_b32 {sph}, 1")
    loop = k.newlabel("loop")
    k(".p2align 6")
    k.label(loop)
    phase(False)
    k(f"s_add_u32 {sph}, {sph}, 1")
    k(f"s_cmp_lt_u32 {sph}, 8")
    k(f"s_cbranch_scc1 {loop}")
    stp.stamp(3)
    k("s_waitcnt lgkmcnt(0)")
    k(f"{MF} {O}, {Vf[1][0:4]}, {P[1][0:4]}, {O}")
    k(f"{MF} {O}, {Vf[1][4:8]}, {P[1][4:8]}, {O}")
    osrd = k.srd(ws, 0x200000, L.OF, r=qsrd)
    gsrd = k.srd(ws, 0x200000, L.GF, r=hsrd)
    k("s_waitcnt vmcnt(0)")
    k("s_barrier")
    xa = k.v()
    k(f"s_and_b32 {st}, {sw}, 3"); k(f"s_lshl_b32 {st}, {st}, 12")
    k(f"v_add_u32 {xa}, {st}, {l16}")
    lk1 = k.newlabel("kh1"); lj = k.newlabel("khj")
    k(f"s_cmp_eq_u32 {skh}, 1")
    k(f"s_cbranch_scc1 {lk1}")
    k(f"ds_write_b128 {xa}, {DA[8:12]} offset:2048")
    k(f"ds_write_b128 {xa}, {DA[12:16]} offset:3072")
    k(f"s_branch {lj}")
    k.label(lk1)
    k(f"ds_write_b128 {xa}, {DA[0:4]}")
    k(f"ds_write_b128 {xa}, {DA[4:8]} offset:1024")
    for i in range(8): k(f"v_mov_b32 {DA[i]}, {DA[8+i]}")
    k(f"v_add_u32 {xa}, 2048, {xa}")
    k.label(lj)
    k(f"v_max3_f32 {tmp}, |{O[0]}|, |{O[1]}|, |{O[2]}|")
    k(f"v_max3_f32 {tmp}, |{O[3]}|, |{O[4]}|, {tmp}")
    k(f"v_max3_f32 {tmp}, |{O[5]}|, |{O[6]}|, {tmp}")
    k(f"v_max_f32 {tmp}, |{O[7]}|, {tmp}")
    sc1 = k.s(2); sct = k.s()
    k(f"v_mov_b32 {tmp2}, 0x7f800000")
    k(f"v_cmp_nlt_f32 vcc, {tmp}, {tmp2}")
    k(f"v_mov_b32 {tmp2}, 0x5f800000")
    k(f"v_cmp_nle_f32 {sc1}, {O[8]}, {tmp2}")
    k.nop(4)
    k(f"s_or_b64 vcc, vcc, {sc1}")
    fb = k.newlabel("fb"); fin = k.newlabel("fin")
    k(f"s_cbranch_scc1 {fb}")
    k.label(fin)
    k(f"v_rcp_f32 {tmp}, {O[8]}")
    k.nop(1)
    for i in range(8): k(f"v_mul_f32 {O[i]}, {O[i]}, {tmp}")
    for i in range(4): k(f"v_cvt_pk_bf16_f32 {P[0][i]}, {O[2*i]}, {O[2*i+1]}")
    k(f"buffer_store_dwordx4 {P[0][0:4]}, {l16}, {osrd}, {sq} offen")
    k("s_waitcnt lgkmcnt(0)")
    k("s_barrier")
    k(f"ds_read_b128 {DA[8:12]}, {xa}")
    k(f"ds_read_b128 {DA[12:16]}, {xa} offset:1024")
    k("s_waitcnt lgkmcnt(0)")
    T = S[0]
    for i in range(8): k(f"v_add_f32 {DA[i]}, {DA[i]}, {DA[8+i]}")
    for i in range(8): k(f"v_mul_f32 {T[i]}, {fbits(-1.4426950408889634)}, {DA[i]}")
    for i in range(8): k(f"v_exp_f32 {T[i]}, {T[i]}")
    for i in range(8): k(f"v_add_f32 {T[i]}, 1.0, {T[i]}")
    for i in range(8): k(f"v_rcp_f32 {T[i]}, {T[i]}")
    for i in range(8): k(f"v_mul_f32 {DA[i]}, {DA[i]}, {T[i]}")
    for i in range(4): k(f"v_cvt_pk_bf16_f32 {P[1][i]}, {DA[2*i]}, {DA[2*i+1]}")
    k(f"buffer_store_dwordx4 {P[1][0:4]}, {l16}, {gsrd}, {sq} offen")
    if stamps:
        k("s_waitcnt vmcnt(0)")
        k("s_barrier")
        stp.stamp(1)
        stp.flush(ws, tmp, tmp2)
    k.label(lend)
    k("s_endpgm")
    k.label(fb)
    R = dict(Q=Q, C=C, O=O, S=S, P=P, Kf=Kf, Vf=Vf, gk=l16, gv=gv, tmp=tmp, tmp2=tmp2, sct=sct, vmask=vmask)
    emit_attn_fallback(k, R, kvsrd, lane, fin)
    return k

P3_LDS = 32768 + 16384
def p3_kernel(name, stamps=0, kidx=2, mapmode="8x4"):
    k = Kernel(name, 256, 512, P3_LDS)
    lend = k.newlabel("end")
    k("s_cmp_ge_u32 s2, 256")
    k(f"s_cbranch_scc1 {lend}")
    ws = k.s(2); po = k.s(2); px = k.s(2); pout = k.s(2)
    k(f"s_load_dwordx2 {ws}, s[0:1], 88")
    k(f"s_load_dwordx2 {po}, s[0:1], 32")
    k(f"s_load_dwordx2 {px}, s[0:1], 0")
    k(f"s_load_dwordx2 {pout}, s[0:1], 72")
    stp = Stamper(k, kidx, stamps)
    stp.stamp(0)
    lane = k.v(); tmp = k.v(); tmp2 = k.v(); l16 = k.v()
    sw = k.s(); srb = k.s(); scg = k.s(); st = k.s(); st2 = k.s()
    k(f"v_lshrrev_b32 {tmp}, 6, v0")
    k(f"v_and_b32 {lane}, 63, v0")
    k(f"v_readfirstlane_b32 {sw}, {tmp}")
    k(f"v_lshlrev_b32 {l16}, 4, {lane}")
    emit_map(k, srb, scg, st, mapmode)
    srt = k.s(); skh = k.s(); sq = k.s(); soo = k.s()
    k(f"s_lshl_b32 {srt}, {srb}, 2"); k(f"s_and_b32 {st}, {sw}, 3"); k(f"s_add_u32 {srt}, {srt}, {st}")
    k(f"s_lshr_b32 {skh}, {sw}, 2")
    k(f"s_lshl_b32 {sq}, {srt}, 4"); k(f"s_add_u32 {sq}, {sq}, {scg}"); k(f"s_lshl_b32 {sq}, {sq}, 1")
    k(f"s_add_u32 {sq}, {sq}, {skh}"); k(f"s_lshl_b32 {sq}, {sq}, 10")
    k(f"s_lshl_b32 {soo}, {srt}, 1"); k(f"s_add_u32 {soo}, {soo}, {skh}"); k(f"s_lshl_b32 {soo}, {soo}, 14")
    vW = k.v()
    k(f"v_lshrrev_b32 {tmp}, 2, {lane}"); k(f"v_lshlrev_b32 {vW}, 10, {tmp}")
    k(f"v_and_b32 {tmp}, 3, {lane}"); k(f"v_lshl_add_u32 {vW}, {tmp}, 4, {vW}")
    vx = k.v()
    k(f"v_and_b32 {tmp}, 31, {lane}"); k(f"v_lshlrev_b32 {vx}, 10, {tmp}")
    k(f"v_lshrrev_b32 {tmp2}, 5, {lane}"); k(f"v_lshl_add_u32 {vx}, {tmp2}, 3, {vx}")
    sxo = k.s()
    k(f"s_lshl_b32 {sxo}, {srt}, 15"); k(f"s_lshl_b32 {st}, {scg}, 6"); k(f"s_add_u32 {sxo}, {sxo}, {st}")
    k(f"s_lshl_b32 {st}, {skh}, 5"); k(f"s_add_u32 {sxo}, {sxo}, {st}")
    k("s_waitcnt lgkmcnt(0)")
    osrd = k.srd(ws, 0x200000, L.OF); gsrd = k.srd(ws, 0x200000, L.GF)
    wsrd = k.srd(po, 512 * 1024); xsrd = k.srd(px, 2048 * 1024); outsrd = k.srd(pout, 2048 * 1024)
    sdo = k.s()
    k(f"s_lshl_b32 {sdo}, {sw}, 16"); k(f"s_lshl_b32 {st}, {scg}, 6"); k(f"s_add_u32 {sdo}, {sdo}, {st}")
    k(f"s_lshl_b32 {st}, {sw}, 12")
    k(f"s_mov_b32 m0, {st}")
    for j in range(4):
        k.nop(1)
        k(f"buffer_load_dwordx4 {vW}, {wsrd}, {sdo} offen offset:{j*1024} lds")
        k(f"s_add_u32 {sdo}, {sdo}, {16384 - 1024}")
    Of = [k.v(4) for _ in range(16)]
    for j in range(16):
        k(f"buffer_load_dwordx4 {Of[j]}, {l16}, {osrd}, {soo} offen offset:{(j & 3) * 1024}")
        if j & 3 == 3: k(f"s_add_u32 {soo}, {soo}, 4096")
    G = k.v(4); X = k.v(4)
    k(f"buffer_load_dwordx4 {G}, {l16}, {gsrd}, {sq} offen")
    k(f"buffer_load_dwordx2 {X[0:2]}, {vx}, {xsrd}, {sxo} offen")
    k(f"buffer_load_dwordx2 {X[2:4]}, {vx}, {xsrd}, {sxo} offen offset:16")
    aw = k.v()
    k(f"v_bfe_u32 {tmp}, {lane}, 2, 2"); k(f"v_lshlrev_b32 {aw}, 6, {tmp}")
    k(f"v_lshl_add_u32 {aw}, {tmp2}, 8, {aw}")
    k(f"v_bfe_u32 {tmp}, {lane}, 4, 1"); k(f"v_lshl_add_u32 {aw}, {tmp}, 5, {aw}")
    k(f"v_and_b32 {tmp}, 3, {lane}"); k(f"v_lshl_add_u32 {aw}, {tmp}, 3, {aw}")
    k(f"s_lshl_b32 {st}, {skh}, 14")
    k(f"v_add_u32 {aw}, {st}, {aw}")
    Wf = [k.v(4) for _ in range(16)]
    SA = k.v(16)
    k("s_waitcnt vmcnt(19)")
    k("s_barrier")
    for j in range(16):
        k(f"ds_read_b64_tr_b16 {Wf[j][0:2]}, {aw} offset:{j*1024}")
        k(f"ds_read_b64_tr_b16 {Wf[j][2:4]}, {aw} offset:{j*1024+512}")
        if j == 6: k("s_waitcnt lgkmcnt(8)")
        if j > 6: k("s_waitcnt lgkmcnt(8)")
    k("s_waitcnt lgkmcnt(0)")
    for j in range(16):
        k(f"s_waitcnt vmcnt({18 - j})")
        k(f"{MF} {SA}, {Wf[j]}, {Of[j]}, {SA if j else 0}")
    k.nop(16)
    xa = k.v()
    k(f"s_and_b32 {st}, {sw}, 3"); k(f"s_lshl_b32 {st}, {st}, 12"); k(f"s_add_u32 {st}, {st}, 32768")
    k(f"v_add_u32 {xa}, {st}, {l16}")
    lk1 = k.newlabel("kh1"); lj = k.newlabel("khj")
    k(f"s_cmp_eq_u32 {skh}, 1")
    k(f"s_cbranch_scc1 {lk1}")
    k(f"ds_write_b128 {xa}, {SA[8:12]} offset:2048")
    k(f"ds_write_b128 {xa}, {SA[12:16]} offset:3072")
    k(f"s_branch {lj}")
    k.label(lk1)
    k(f"ds_write_b128 {xa}, {SA[0:4]}")
    k(f"ds_write_b128 {xa}, {SA[4:8]} offset:1024")
    for i in range(8): k(f"v_mov_b32 {SA[i]}, {SA[8+i]}")
    k(f"v_add_u32 {xa}, 2048, {xa}")
    k.label(lj)
    k("s_waitcnt lgkmcnt(0)")
    k("s_barrier")
    k(f"ds_read_b128 {SA[8:12]}, {xa}")
    k(f"ds_read_b128 {SA[12:16]}, {xa} offset:1024")
    Gf = Wf[0].base; T = Reg('v', Wf[0].base, 16)
    k("s_waitcnt vmcnt(0)")
    for i in range(4):
        k(f"v_lshlrev_b32 {T[2*i]}, 16, {G[i]}"); k(f"v_and_b32 {T[2*i+1]}, 0xffff0000, {G[i]}")
        k(f"v_lshlrev_b32 {T[8+2*i]}, 16, {X[i]}"); k(f"v_and_b32 {T[8+2*i+1]}, 0xffff0000, {X[i]}")
    k("s_waitcnt lgkmcnt(0)")
    for i in range(8): k(f"v_add_f32 {SA[i]}, {SA[i]}, {SA[8+i]}")
    for i in range(8): k(f"v_fma_f32 {SA[i]}, {SA[i]}, {T[i]}, {T[8+i]}")
    for i in range(4): k(f"v_cvt_pk_bf16_f32 {X[i]}, {SA[2*i]}, {SA[2*i+1]}")
    k(f"buffer_store_dwordx2 {X[0:2]}, {vx}, {outsrd}, {sxo} offen")
    k(f"buffer_store_dwordx2 {X[2:4]}, {vx}, {outsrd}, {sxo} offen offset:16")
    if stamps:
        k("s_waitcnt vmcnt(0)")
        k("s_barrier")
        stp.stamp(1)
        stp.flush(ws, tmp, tmp2)
    k.label(lend)
    k("s_endpgm")
    return k
```

```python
import sys
from asm import *
import p1, p2
HDR = open("recurrent_scan__grouped_kv_mqa__geglu_ffn__prompt.s.ref").read().split("; Override launch")[0]
def build(path, stamps):
    k1 = p1.p1_kernel("p1_kernel", stamps=stamps, kidx=0)
    k2 = p2.p2_kernel("p2_kernel", stamps=stamps, kidx=1)
    k3 = p2.p3_kernel("p3_kernel", stamps=min(stamps, 2), kidx=2)
    n = 0
    for k in (k1, k2, k3):
        e = check_hazards(k.lines, k.name); n += len(e)
        print(k.name, "vgprs", k.vhigh, "sgprs", k.shigh, "hazards", len(e), "lds", k.lds)
    t = module_text(HDR, [k1, k2, k3], [(k.name, 256, 512, k.lds) for k in (k1, k2, k3)])
    open(path, "w").write(t)
build("t_a.s", 4)
build("recurrent_scan__grouped_kv_mqa__geglu_ffn__prompt.s", 0)
```

```python
from asm import *
import layout as L

MF = "v_mfma_f32_32x32x16_bf16"

def emit_attn_fallback(k, R, kvsrd, lane, done_label, sc=''):
    Q, C, O, S, P, Kf, Vf = R['Q'], R['C'], R['O'], R['S'][0], R['P'][0], R['Kf'][0], R['Vf'][0]
    vk, vv, tmp, tmp2, sct, vmask = R['gk'], R['gv'], R['tmp'], R['tmp2'], R['sct'], R['vmask']
    k(f"v_mov_b32 {tmp}, 0xff800000")
    k(f"s_mov_b32 {sct}, 0")
    l1 = k.newlabel("fb1")
    k.label(l1)
    k(f"buffer_load_dwordx4 {Kf}, {vk}, {kvsrd}, {sct} offen{sc}")
    k("s_waitcnt vmcnt(0)")
    k(f"{MF} {S}, {Kf}, {Q}, 0")
    k.nop(16)
    for i in range(0, 16, 2):
        k(f"v_max3_f32 {tmp}, {S[i]}, {S[i+1]}, {tmp}")
    k(f"s_add_u32 {sct}, {sct}, 2048")
    k(f"s_cmp_lt_u32 {sct}, {64*2048}")
    k(f"s_cbranch_scc1 {l1}")
    k(f"v_mov_b32 {tmp2}, {tmp}")
    k.nop(2)
    k(f"v_permlane32_swap_b32 {tmp}, {tmp2}")
    k.nop(2)
    k(f"v_max_f32 {tmp}, {tmp}, {tmp2}")
    for i in range(16):
        k(f"v_sub_f32 {C[i]}, 0, {tmp}")
        k(f"v_mov_b32 {O[i]}, 0")
    k(f"s_mov_b32 {sct}, 0")
    l2 = k.newlabel("fb2")
    k.label(l2)
    k(f"buffer_load_dwordx4 {Kf}, {vk}, {kvsrd}, {sct} offen{sc}")
    k(f"s_mov_b64 exec, {vmask}")
    k(f"buffer_load_dwordx4 {Vf[0:4]}, {vv}, {kvsrd}, {sct} offen{sc}")
    k(f"buffer_load_dwordx4 {Vf[4:8]}, {vv}, {kvsrd}, {sct} offen offset:512{sc}")
    k("s_mov_b64 exec, -1")
    k("s_waitcnt vmcnt(0)")
    k(f"{MF} {S}, {Kf}, {Q}, {C}")
    k.nop(16)
    for i in range(16):
        k(f"v_exp_f32 {S[i]}, {S[i]}")
    k.nop(1)
    for i in range(8):
        k(f"v_cvt_pk_bf16_f32 {P[i]}, {S[2*i]}, {S[2*i+1]}")
    k.nop(2)
    k(f"{MF} {O}, {Vf[0:4]}, {P[0:4]}, {O}")
    k(f"{MF} {O}, {Vf[4:8]}, {P[4:8]}, {O}")
    k.nop(16)
    k(f"s_add_u32 {sct}, {sct}, 2048")
    k(f"s_cmp_lt_u32 {sct}, {64*2048}")
    k(f"s_cbranch_scc1 {l2}")
    k(f"s_branch {done_label}")

def attn_kernel(name, NW=8, variant=0, stamps=0, kidx=0):
    k = Kernel(name, 256, NW * 64, 65536)
    ws = k.s(2)
    k(f"s_cmp_ge_u32 s2, 256")
    lend = k.newlabel("end")
    k(f"s_cbranch_scc1 {lend}")
    k(f"s_load_dwordx2 {ws}, s[0:1], 88")
    stp = Stamper(k, kidx, stamps)
    stp.stamp(0)
    lane = k.v(); wv = k.v()
    k(f"v_and_b32 {lane}, 63, v0")
    k(f"v_lshrrev_b32 {wv}, 6, v0")
    sw = k.s()
    k.nop(1)
    k(f"v_readfirstlane_b32 {sw}, {wv}")
    l16 = k.v()
    k(f"v_lshlrev_b32 {l16}, 4, {lane}")
    k("s_waitcnt lgkmcnt(0)")
    qsrd = k.srd(ws, 0x200000, L.QF)
    osrd = k.srd(ws, 0x200000, L.OF)
    kvsrd = k.srd(ws, 0x20000, L.KVF)
    srt = k.s(); shd = k.s(); st = k.s(); sq = k.s()
    k(f"s_lshr_b32 {srt}, s2, 4")
    k(f"s_lshl_b32 {srt}, {srt}, 2")
    k(f"s_and_b32 {st}, {sw}, 3")
    k(f"s_add_u32 {srt}, {srt}, {st}")
    k(f"s_and_b32 {shd}, s2, 15")
    k(f"s_lshl_b32 {shd}, {shd}, 1")
    k(f"s_lshr_b32 {st}, {sw}, 2")
    k(f"s_add_u32 {shd}, {shd}, {st}")
    k(f"s_lshl_b32 {sq}, {srt}, 5")
    k(f"s_add_u32 {sq}, {sq}, {shd}")
    k(f"s_lshl_b32 {sq}, {sq}, 10")
    Q = k.v(4); C = k.v(16); O = k.v(16); S = [k.v(16), k.v(16)]; P = [k.v(8), k.v(8)]
    Kf = [k.v(4), k.v(4)]; Vf = [k.v(8), k.v(8)]
    k(f"buffer_load_dwordx4 {Q}, {l16}, {qsrd}, {sq} offen")
    sgo = k.s(); slds = k.s(); sw2k = k.s()
    k(f"s_lshl_b32 {sw2k}, {sw}, 11")
    def dma(goff_s, lds_s):
        k(f"s_mov_b32 m0, {lds_s}")
        k.nop(1)
        k(f"buffer_load_dwordx4 {l16}, {kvsrd}, {goff_s} offen lds")
        k(f"buffer_load_dwordx4 {l16}, {kvsrd}, {goff_s} offen offset:1024 lds")
    k(f"s_mov_b32 {sgo}, {sw2k}")
    for p in range(3):
        dma(sgo, sgo)
        k(f"s_add_u32 {sgo}, {sgo}, 16384")
    ak = k.v(); av = k.v(); akn = k.v(); avn = k.v(); tmp = k.v(); tmp2 = k.v()
    gv = k.v()
    k(f"v_mov_b32 {ak}, {l16}")
    k(f"v_and_b32 {tmp}, 15, {lane}")
    k(f"v_lshlrev_b32 {tmp}, 4, {tmp}")
    k(f"v_lshrrev_b32 {tmp2}, 5, {lane}")
    k(f"v_lshlrev_b32 {tmp2}, 8, {tmp2}")
    k(f"v_add3_u32 {av}, {tmp}, {tmp2}, 1024" if False else f"v_add_u32 {av}, {tmp}, {tmp2}")
    k(f"v_add_u32 {av}, 1024, {av}")
    k(f"v_mov_b32 {gv}, {av}")
    k(f"v_add_u32 {akn}, 16384, {ak}")
    k(f"v_add_u32 {avn}, 16384, {av}")
    vmask = k.s(2)
    k(f"s_mov_b32 {vmask[0]}, 0x0000ffff")
    k(f"s_mov_b32 {vmask[1]}, 0x0000ffff")
    ones = k.v()
    k(f"v_mov_b32 {ones}, 0x3f803f80")
    if variant & 1:
        k(f"v_and_b32 {tmp}, 27, {lane}")
        k(f"v_cmp_eq_u32 vcc, 16, {tmp}")
        k.nop(2)
        k(f"v_cndmask_b32 {ones}, 0, {ones}, vcc")
    for b in range(2):
        for i in range(8):
            k(f"v_mov_b32 {Vf[b][i]}, {ones}")
            k(f"v_mov_b32 {P[b][i]}, 0")
    for i in range(16): k(f"v_mov_b32 {O[i]}, 0")
    k("s_waitcnt vmcnt(4)")
    k("s_barrier")
    k(f"ds_read_b128 {Kf[0]}, {ak}")
    k(f"ds_read_b128 {Kf[1]}, {ak} offset:2048")
    k("s_waitcnt lgkmcnt(1)")
    k(f"{MF} {S[0]}, {Kf[0]}, {Q}, 0")
    k.nop(16)
    k(f"v_max3_f32 {tmp}, {S[0][0]}, {S[0][1]}, {S[0][2]}")
    for i in range(3, 15, 2):
        k(f"v_max3_f32 {tmp}, {S[0][i]}, {S[0][i+1]}, {tmp}")
    k(f"v_max_f32 {tmp}, {S[0][15]}, {tmp}")
    k(f"v_mov_b32 {tmp2}, {tmp}")
    k.nop(2)
    k(f"v_permlane32_swap_b32 {tmp}, {tmp2}")
    k.nop(2)
    k(f"v_max_f32 {tmp}, {tmp}, {tmp2}")
    for i in range(16): k(f"v_sub_f32 {C[i]}, 0, {tmp}")
    k.nop(2)
    k(f"{MF} {S[0]}, {Kf[0]}, {Q}, {C}")
    k.nop(10)
    sph = k.s()
    k(f"s_mov_b32 {sph}, 0")
    stp.stamp(2, True); stp.stamp(4)
    loop = k.newlabel("loop")
    k(".p2align 6")
    k.label(loop)
    for t in range(8):
        cur, nxt = t & 1, (t & 1) ^ 1
        if t == 6:
            k("s_waitcnt vmcnt(2)")
            k("s_barrier")
        k("s_waitcnt lgkmcnt(0)")
        k(f"{MF} {S[nxt]}, {Kf[nxt]}, {Q}, {C}")
        def rd():
            tk = t + 2
            if tk < 8: k(f"ds_read_b128 {Kf[cur]}, {ak} offset:{tk*2048}")
            else: k(f"ds_read_b128 {Kf[cur]}, {akn} offset:{(tk-8)*2048}")
            k(f"s_mov_b64 exec, {vmask}")
            k(f"ds_read_b128 {Vf[cur][0:4]}, {av} offset:{t*2048}")
            k(f"ds_read_b128 {Vf[cur][4:8]}, {av} offset:{t*2048+512}")
            k("s_mov_b64 exec, -1")
        for i in range(16):
            if not variant & 4: k(f"v_exp_f32 {S[cur][i]}, {S[cur][i]}")
            else: k(f"v_mov_b32 {S[cur][i]}, {S[cur][i]}"); k(f"v_mov_b32 {S[cur][i]}, {S[cur][i]}")
            if i == 1: rd()
            if i == 4 and not variant & 2: k(f"{MF} {O}, {Vf[nxt][0:4]}, {P[nxt][0:4]}, {O}")
            if i == 9 and not variant & 2: k(f"{MF} {O}, {Vf[nxt][4:8]}, {P[nxt][4:8]}, {O}")
            if i % 2 == 1 and i >= 3:
                j = (i - 3) // 2
                k(f"v_cvt_pk_bf16_f32 {P[cur][j]}, {S[cur][2*j]}, {S[cur][2*j+1]}")
            if t == 6 and i == 12:
                k(f"s_and_b32 {slds}, {sgo}, 0xffff")
                k(f"s_and_b32 {st}, {sgo}, 0x1ffff")
                dma(st, slds)
                k(f"s_add_u32 {sgo}, {sgo}, 16384")
        if t == 7:
            k(f"v_mov_b32 {ak}, {akn}")
            k(f"v_mov_b32 {av}, {avn}")
            k(f"v_cvt_pk_bf16_f32 {P[cur][7]}, {S[cur][14]}, {S[cur][15]}")
            k(f"v_add_u32 {akn}, 16384, {akn}")
            k(f"v_add_u32 {avn}, 16384, {avn}")
            k(f"v_and_b32 {akn}, 0xffff, {akn}")
            k(f"v_and_b32 {avn}, 0xffff, {avn}")
        else:
            k.nop(1)
            k(f"v_cvt_pk_bf16_f32 {P[cur][7]}, {S[cur][14]}, {S[cur][15]}")
    k(f"s_add_u32 {sph}, {sph}, 1")
    k(f"s_cmp_lt_u32 {sph}, 8")
    k(f"s_cbranch_scc1 {loop}")
    stp.stamp(3, True); stp.stamp(5)
    k("s_waitcnt lgkmcnt(0)")
    k(f"{MF} {O}, {Vf[1][0:4]}, {P[1][0:4]}, {O}")
    k(f"{MF} {O}, {Vf[1][4:8]}, {P[1][4:8]}, {O}")
    k.nop(16)
    k(f"v_max3_f32 {tmp}, |{O[0]}|, |{O[1]}|, |{O[2]}|")
    k(f"v_max3_f32 {tmp}, |{O[3]}|, |{O[4]}|, {tmp}")
    k(f"v_max3_f32 {tmp}, |{O[5]}|, |{O[6]}|, {tmp}")
    k(f"v_max_f32 {tmp}, |{O[7]}|, {tmp}")
    sc1 = k.s(2); sct = k.s()
    k(f"v_mov_b32 {tmp2}, 0x7f800000")
    k(f"v_cmp_nlt_f32 vcc, {tmp}, {tmp2}")
    k(f"v_mov_b32 {tmp2}, 0x5f800000")
    k(f"v_cmp_nle_f32 {sc1}, {O[8]}, {tmp2}")
    k.nop(4)
    k(f"s_or_b64 vcc, vcc, {sc1}")
    fb = k.newlabel("fb"); fin = k.newlabel("fin")
    k(f"s_cbranch_scc1 {fb}")
    k.label(fin)
    k(f"v_rcp_f32 {tmp}, {O[8]}")
    k.nop(1)
    for i in range(8): k(f"v_mul_f32 {O[i]}, {O[i]}, {tmp}")
    for i in range(4): k(f"v_cvt_pk_bf16_f32 {P[0][i]}, {O[2*i]}, {O[2*i+1]}")
    k(f"buffer_store_dwordx4 {P[0][0:4]}, {l16}, {osrd}, {sq} offen")
    if stamps:
        k("s_waitcnt vmcnt(0)")
        k("s_barrier")
        stp.stamp(1)
        stp.flush(ws, tmp, tmp2)
    k.label(lend)
    k("s_endpgm")
    k.label(fb)
    R = dict(Q=Q, C=C, O=O, S=S, P=P, Kf=Kf, Vf=Vf, gk=l16, gv=gv, tmp=tmp, tmp2=tmp2, sct=sct, vmask=vmask)
    k("s_waitcnt vmcnt(0)")
    emit_attn_fallback(k, R, kvsrd, lane, fin)
    return k

if __name__ == "__main__":
    import sys
    for var in [int(x) for x in sys.argv[1:]] or [0]:
        k = attn_kernel("attn_kernel", stamps=6, variant=var)
        errs = check_hazards(k.lines, k.name)
        t = module_text("; attention test\n", [k], [(k.name, 256, 512, 65536 + 32768)])
        open(f"t_attn{var}.s", "w").write(t)
        print("vgprs", k.vhigh, "sgprs", k.shigh, "hazards", len(errs))
```

```python
S, D, H, DH, F = 2048, 512, 32, 16, 1792
QF  = 0x000000
OF  = 0x200000
GF  = 0x400000
KVF = 0x600000
HF  = 0x800000
WS_BYTES = 268435456
QSCALE = 0.25 * 1.4426950408889634
def kslot(hh, j): return 8 * (j >> 2) + 4 * hh + (j & 3)
STAMP = 0x1800000
SYNC  = 0x700000
NONCE = SYNC
FL_KV = SYNC + 0x1000
FL_Q  = SYNC + 0x2000
FL_H  = SYNC + 0x4000
FL_O  = SYNC + 0x8000
ROWG  = SYNC + 0x10000
CSP   = SYNC + 0x20000
SYNC_BYTES = 0xA0000
FL_P  = SYNC + 0xC000
```

```python
from asm import *
import layout as L
from p1 import fbits, C0, C1
import mega as M
MF = "v_mfma_f32_32x32x16_bf16"
MF16 = "v_mfma_f32_16x16x32_bf16"

def emit_service(k, E):
    g = lambda n: E[n]
    lane, l16, t0, t1, t2, t3, r16, kg = (g(x) for x in "lane l16 t0 t1 t2 t3 r16 kg".split())
    sw, srb, sj, st, st2, tag, sb = (g(x) for x in "sw srb sj st st2 tag sb".split())
    wsrd, xsrd, aW, stp, stop, var = (g(x) for x in "wsrd xsrd aW stp stop var".split())
    pk_, pv, pd, pwo, pout, mktag = (g(x) for x in "pk_ pv pd pwo pout mktag".split())
    sq = sb
    srdK = k.s(4)
    k(f"s_bitcmp1_b32 {sj}, 0")
    k(f"s_cselect_b64 {srdK[0:2]}, {pv}, {pk_}")
    k(f"s_and_b32 {srdK[1]}, {srdK[1]}, 0xffff"); k(f"s_mov_b32 {srdK[2]}, 16384"); k(f"s_mov_b32 {srdK[3]}, 0x20000")
    dsrd = k.srd(pd, 1792 * 1024); wosrd = k.srd(pwo, 512 * 1024); outsrd = k.srd(pout, 2048 * 1024)
    so = k.s(); so2 = k.s(); sok = k.s(2); sspin = k.s(); sv = k.s(2)
    mkS = k.mark()
    va = k.v(); vb = k.v()
    k(f"s_lshr_b32 {st}, {sj}, 1"); k(f"s_lshl_b32 {st}, {st}, 4"); k(f"s_lshl_b32 {so}, {srb}, 7"); k(f"s_add_u32 {so}, {so}, {st}")
    k(f"s_lshl_b32 {so}, {so}, 10"); k(f"s_lshl_b32 {st}, {sq}, 8"); k(f"s_add_u32 {so}, {so}, {st}")
    k(f"s_lshl_b32 {st2}, {sq}, 12")
    k(f"v_xor_b32 {t0}, {r16}, {kg}")
    k(f"v_lshlrev_b32 {va}, 10, {kg}"); k(f"v_lshl_add_u32 {va}, {t0}, 4, {va}")
    for n in range(4):
        k(f"s_add_u32 m0, {st2}, {M.TASKX + n*1024}")
        if n: k(f"v_xor_b32 {vb}, {n*64}, {va}")
        else: k.nop(1)
        k(f"buffer_load_dwordx4 {vb if n else va}, {xsrd}, {so} offen lds")
        k(f"s_add_u32 {so}, {so}, 4096")
    k(f"v_lshrrev_b32 {t1}, 1, {lane}")
    k(f"v_and_b32 {t2}, 0x13, {t1}"); k(f"v_and_b32 {t3}, 4, {t1}"); k(f"v_lshl_or_b32 {t2}, {t3}, 1, {t2}")
    k(f"v_and_b32 {t3}, 8, {t1}"); k(f"v_lshrrev_b32 {t3}, 1, {t3}"); k(f"v_or_b32 {t2}, {t3}, {t2}")
    k(f"v_lshlrev_b32 {vb}, 5, {t2}"); k(f"v_and_b32 {t0}, 1, {lane}"); k(f"v_lshl_add_u32 {vb}, {t0}, 4, {vb}")
    k(f"s_add_u32 m0, {st2}, {M.TASKW}"); k.nop(1)
    for n in range(4): k(f"buffer_load_dwordx4 {vb}, {srdK}, {st2} offen offset:{n*1024} lds")
    pf = k.v(4)
    k(f"v_lshlrev_b32 {t0}, 7, {lane}")
    k(f"s_lshl_b32 {so}, {srb}, 17"); k(f"s_and_b32 {st}, {sj}, 7"); k(f"s_lshl_b32 {st}, {st}, 14"); k(f"s_add_u32 {so}, {so}, {st}")
    k(f"s_and_b32 {st}, {sq}, 1"); k(f"s_lshl_b32 {st}, {st}, 13"); k(f"s_add_u32 {so}, {so}, {st}")
    k(f"buffer_load_dword {pf[0]}, {t0}, {xsrd}, {so} offen")
    ax = k.v(); awk = k.v()
    k(f"v_xor_b32 {t0}, {r16}, {kg}")
    k(f"v_lshlrev_b32 {ax}, 8, {r16}"); k(f"v_lshl_add_u32 {ax}, {t0}, 4, {ax}"); k(f"v_add_u32 {ax}, {st2}, {ax}")
    k(f"v_lshrrev_b32 {t0}, 1, {kg}"); k(f"v_lshlrev_b32 {t1}, 4, {t0}")
    k(f"v_and_b32 {t0}, 1, {kg}"); k(f"v_lshl_add_u32 {t1}, {t0}, 2, {t1}")
    k(f"v_lshrrev_b32 {t0}, 2, {r16}"); k(f"v_add_u32 {t1}, {t1}, {t0}")
    k(f"v_and_b32 {t0}, 3, {lane}"); k(f"v_lshlrev_b32 {t0}, 3, {t0}")
    k(f"v_lshl_add_u32 {awk}, {t1}, 5, {t0}"); k(f"v_add_u32 {awk}, {st2}, {awk}")
    ones = k.v(4); fw = [k.v(4) for _ in range(4)]; fx = [k.v(4) for _ in range(4)]
    cs = [k.v(4) for _ in range(4)]
    A4 = k.v(16); kv, ckv, ssum, ssq = A4[0:4], A4[4:8], A4[8:12], A4[12:16]
    B4 = [k.v(16) for _ in range(3)]
    gr = k.v(4)
    for r in range(4): k(f"v_mov_b32 {ones[r]}, 0x3f803f80")
    mktag()
    k("s_barrier")
    for T in range(4):
        o = (T & 1) * 8192
        k(f"ds_read_b64_tr_b16 {fw[T][0:2]}, {aW[T >> 1]} offset:{o}")
        k(f"ds_read_b64_tr_b16 {fw[T][2:4]}, {aW[T >> 1]} offset:{o+1024}")
    k("s_waitcnt lgkmcnt(0)")
    k("s_barrier")
    for T in range(4): k(f"{MF16} {cs[T]}, {ones}, {fw[T]}, 0")
    k(f"v_mov_b32 {gr[2]}, {tag[0]}"); k(f"v_mov_b32 {gr[3]}, {tag[1]}")
    k(f"v_cmp_eq_u32 vcc, 1, {kg}")
    k(f"s_lshl_b32 {so}, {sj}, 2"); k(f"s_add_u32 {so}, {so}, {sq}"); k(f"s_lshl_b32 {so2}, {so}, 13"); k(f"s_add_u32 {so2}, {so2}, {L.CSP}")
    k(f"s_lshl_b32 {so}, {srb}, 9"); k(f"s_add_u32 {so}, {so}, {so2}")
    k.nop(4)
    k(f"v_cndmask_b32 {gr[0]}, {cs[0][0]}, {cs[2][0]}, vcc")
    k(f"v_cndmask_b32 {gr[1]}, {cs[1][0]}, {cs[3][0]}, vcc")
    k("s_mov_b64 exec, 0xffffffff")
    k(f"buffer_store_dwordx4 {gr}, {l16}, {wsrd}, {so} offen sc1")
    k("s_mov_b64 exec, -1")
    k("s_barrier")
    k("s_waitcnt vmcnt(2)")
    for s_ in range(4):
        if s_: k(f"v_xor_b32 {t0}, {s_*64}, {ax}")
        k(f"ds_read_b128 {fx[s_]}, {t0 if s_ else ax} offset:{M.TASKX}")
        k(f"ds_read_b64_tr_b16 {fw[s_][0:2]}, {awk} offset:{M.TASKW + s_*1024}")
        k(f"ds_read_b64_tr_b16 {fw[s_][2:4]}, {awk} offset:{M.TASKW + s_*1024 + 256}")
    k("s_waitcnt lgkmcnt(0)")
    lv = k.newlabel("tv"); lj = k.newlabel("tj")
    k(f"s_bitcmp1_b32 {sj}, 0"); k(f"s_cbranch_scc1 {lv}")
    for s_ in range(4):
        k(f"{MF16} {kv}, {fw[s_]}, {fx[s_]}, {kv if s_ else 0}")
        k(f"{MF16} {ckv}, {fw[s_]}, {ones}, {ckv if s_ else 0}")
    k(f"s_branch {lj}")
    k.label(lv)
    for s_ in range(4):
        k(f"{MF16} {kv}, {fx[s_]}, {fw[s_]}, {kv if s_ else 0}")
        k(f"{MF16} {ckv}, {ones}, {fw[s_]}, {ckv if s_ else 0}")
    k.label(lj)
    k("s_barrier")
    for s_ in range(4):
        k(f"{MF16} {ssum}, {ones}, {fx[s_]}, {ssum if s_ else 0}")
        k(f"{MF16} {ssq}, {fx[s_]}, {fx[s_]}, {ssq if s_ else 0}")
    k("s_barrier")
    k.nop(8)
    l_ = k.newlabel("nw")
    k(f"s_cmp_eq_u32 {sq}, 0"); k(f"s_cbranch_scc1 {l_}")
    k(f"v_add_u32 {t0}, {st2}, {l16}")
    for j in range(4): k(f"ds_write_b128 {t0}, {A4[4*j:4*j+4]} offset:{M.TASKR - 4096 + j*1024}")
    k("s_waitcnt lgkmcnt(0)")
    k.label(l_)
    k("s_barrier")
    l4 = k.newlabel("b4")
    k(f"s_cmp_lg_u32 {sq}, 0"); k(f"s_cbranch_scc1 {l4}")
    for q_ in range(3):
        for j in range(4): k(f"ds_read_b128 {B4[q_][4*j:4*j+4]}, {l16} offset:{M.TASKR + q_*4096 + j*1024}")
    k("s_waitcnt lgkmcnt(0)")
    for q_ in range(3):
        for i in range(13): k(f"v_add_f32 {A4[i if i < 9 else i + 3]}, {A4[i if i < 9 else i + 3]}, {B4[q_][i if i < 9 else i + 3]}")
    k(f"v_and_b32 {t1}, 3, {r16}")
    k(f"v_cmp_eq_u32 vcc, 1, {t1}"); k.nop(2)
    k(f"v_cndmask_b32 {t0}, {ssq[0]}, {ssq[1]}, vcc")
    k(f"v_cmp_eq_u32 vcc, 2, {t1}"); k.nop(2)
    k(f"v_cndmask_b32 {t0}, {t0}, {ssq[2]}, vcc")
    k(f"v_cmp_eq_u32 vcc, 3, {t1}"); k.nop(2)
    k(f"v_cndmask_b32 {t0}, {t0}, {ssq[3]}, vcc")
    k(f"v_mul_f32 {gr[0]}, {fbits(-1.0/512)}, {ssum[0]}")
    k(f"v_mul_f32 {t0}, {fbits(1.0/512)}, {t0}")
    k(f"v_fma_f32 {t0}, -{gr[0]}, {gr[0]}, {t0}")
    k(f"v_max_f32 {t0}, 0, {t0}")
    k(f"v_add_f32 {gr[1]}, {fbits(1e-5)}, {t0}")
    k(f"v_lshrrev_b32 {t3}, 2, {r16}")
    k(f"v_lshlrev_b32 {t2}, 4, {r16}")
    k(f"v_cmp_eq_u32 vcc, {t3}, {kg}")
    k(f"s_lshr_b32 {st}, {sj}, 1"); k(f"s_lshl_b32 {st}, {st}, 8"); k(f"s_lshl_b32 {so}, {srb}, 11"); k(f"s_add_u32 {so}, {so}, {st}")
    k(f"s_add_u32 {so}, {so}, {L.ROWG}")
    k(f"s_and_saveexec_b64 {sv}, vcc")
    k(f"buffer_store_dwordx4 {gr}, {t2}, {wsrd}, {so} offen sc1")
    k(f"ds_write_b64 {t2}, {gr[0:2]} offset:{M.TASKR}")
    k(f"s_mov_b64 exec, {sv}")
    k("s_waitcnt lgkmcnt(0)")
    k(f"s_lshr_b32 {st}, {sj}, 2"); k(f"s_lshl_b32 {so}, {srb}, 2"); k(f"s_add_u32 {so}, {so}, {st}"); k(f"s_lshl_b32 {so}, {so}, 11")
    k(f"s_add_u32 {so}, {so}, {L.KVF}")
    k(f"s_bfe_u32 {st}, {sj}, 0x10001")
    lv = k.newlabel("ev"); lj = k.newlabel("ej")
    R2 = B4[0]
    k(f"s_bitcmp1_b32 {sj}, 0"); k(f"s_cbranch_scc1 {lv}")
    k(f"ds_read_b64 {R2[0:2]}, {t2} offset:{M.TASKR}")
    k("s_waitcnt lgkmcnt(0)")
    k(f"v_rsq_f32 {t1}, {R2[1]}")
    for r in range(4): k(f"v_fma_f32 {kv[r]}, {ckv[r]}, {R2[0]}, {kv[r]}")
    for r in range(4): k(f"v_mul_f32 {kv[r]}, {kv[r]}, {t1}")
    k(f"s_lshl_b32 {st}, {st}, 8"); k(f"s_add_u32 {so}, {so}, {st}")
    k(f"v_and_b32 {t0}, 1, {kg}"); k(f"v_lshl_add_u32 {t3}, {t0}, 9, {t2}")
    k(f"s_branch {lj}")
    k.label(lv)
    k(f"v_lshlrev_b32 {t0}, 6, {kg}")
    for r in range(4): k(f"ds_read_b64 {R2[2*r:2*r+2]}, {t0} offset:{M.TASKR + 16*r}")
    k("s_waitcnt lgkmcnt(0)")
    for r in range(4): k(f"v_rsq_f32 {R2[2*r+1]}, {R2[2*r+1]}")
    for r in range(4): k(f"v_fma_f32 {kv[r]}, {ckv[0]}, {R2[2*r]}, {kv[r]}")
    for r in range(4): k(f"v_mul_f32 {kv[r]}, {kv[r]}, {R2[2*r+1]}")
    k(f"s_lshl_b32 {st}, {st}, 9"); k(f"s_add_u32 {so}, {so}, {st}"); k(f"s_add_u32 {so}, {so}, 1024")
    k(f"v_and_b32 {t0}, 1, {kg}"); k(f"v_lshl_add_u32 {t3}, {t0}, 8, {t2}")
    k.label(lj)
    k(f"v_cvt_pk_bf16_f32 {R2[8]}, {kv[0]}, {kv[1]}"); k(f"v_cvt_pk_bf16_f32 {R2[9]}, {kv[2]}, {kv[3]}")
    k(f"v_mov_b32 {R2[10]}, {R2[8]}"); k(f"v_mov_b32 {R2[11]}, {R2[9]}")
    k.nop(2)
    k(f"v_permlane32_swap_b32 {R2[8]}, {R2[10]}")
    k(f"v_permlane32_swap_b32 {R2[9]}, {R2[11]}")
    k("s_mov_b64 exec, 0xffffffff")
    k(f"buffer_store_dwordx4 {R2[8:12]}, {t3}, {wsrd}, {so} offen sc1")
    k("s_mov_b64 exec, -1")
    k.label(l4)
    k("s_barrier")
    k(f"s_and_b32 {st}, {srb}, 3"); k(f"s_lshl_b32 {st}, {st}, 1"); k(f"s_and_b32 {so}, {sj}, 1"); k(f"s_add_u32 {st}, {st}, {so}")
    k(f"s_lshl_b32 {st}, {st}, 2"); k(f"s_add_u32 {st}, {st}, {sq}")
    k(f"s_lshr_b32 {so}, {sj}, 1"); k(f"s_lshl_b32 {so}, {so}, 7")
    k(f"s_lshl_b32 {st2}, {st}, 16"); k(f"s_add_u32 {st2}, {st2}, {so}")
    k(f"v_lshlrev_b32 {t0}, 10, {lane}")
    k(f"buffer_load_dword {pf[1]}, {t0}, {dsrd}, {st2} offen")
    k(f"s_lshl_b32 {st2}, {st}, 14"); k(f"s_add_u32 {st2}, {st2}, {so}")
    k("s_mov_b64 exec, 0xffff")
    k(f"buffer_load_dword {pf[2]}, {t0}, {wosrd}, {st2} offen")
    k("s_mov_b64 exec, -1")
    k("s_barrier")
    k("s_barrier")
    l7 = k.newlabel("b7")
    k(f"s_cmp_lg_u32 {sq}, 0"); k(f"s_cbranch_scc1 {l7}")
    k(f"s_lshl_b32 {so}, {srb}, 4"); k(f"s_add_u32 {so}, {so}, {sj}"); k(f"s_lshl_b32 {so}, {so}, 3"); k(f"s_add_u32 {so}, {so}, {L.FL_KV}")
    k(f"v_mov_b32 {t0}, 0")
    k("s_waitcnt vmcnt(2)")
    k("s_mov_b64 exec, 1")
    k(f"buffer_store_dwordx2 {gr[2:4]}, {t0}, {wsrd}, {so} offen sc1")
    k("s_mov_b64 exec, -1")
    k.label(l7)
    k("s_barrier")
    GA = [Reg('v', B4[0].base + 4*i, 4) for i in range(8)]; GR = Reg('v', B4[2].base, 4)
    sro = k.s()
    k(f"s_lshl_b32 {sro}, {srb}, 11"); k(f"s_lshl_b32 {st}, {sq}, 9"); k(f"s_add_u32 {sro}, {sro}, {st}"); k(f"s_add_u32 {sro}, {sro}, {L.ROWG}")
    k(f"v_and_b32 {t3}, 0x1ff, {l16}")
    def gather_issue():
        k(f"s_add_u32 {st}, {so2}, 4096")
        for i in range(8): k(f"buffer_load_dwordx4 {GA[i]}, {l16}, {wsrd}, {st if i >= 4 else so2} offen offset:{(i & 3)*1024} sc1")
        k(f"buffer_load_dwordx4 {GR}, {t3}, {wsrd}, {sro} offen sc1")
    def tagcheck(regs):
        k(f"v_mov_b32 {t0}, 0")
        for (a, b) in regs:
            k(f"v_xor_b32 {t1}, {tag[0]}, {a}"); k(f"v_xor_b32 {t2}, {tag[1]}, {b}")
            k(f"v_or3_b32 {t0}, {t0}, {t1}, {t2}")
        k(f"v_cmp_ne_u32 vcc, 0, {t0}")
        k.nop(4)
        k(f"s_cmp_eq_u64 vcc, 0")
    def gather_finish():
        for i in range(1, 8):
            k(f"v_add_f32 {GA[0][0]}, {GA[0][0]}, {GA[i][0]}"); k(f"v_add_f32 {GA[0][1]}, {GA[0][1]}, {GA[i][1]}")
        k(f"v_mov_b32 {GA[1][0]}, {GA[0][0]}"); k(f"v_mov_b32 {GA[1][1]}, {GA[0][1]}")
        k(f"v_rsq_f32 {t1}, {GR[1]}")
        k(f"v_mov_b32 {GR[3]}, {GR[1]}")
        k(f"v_permlane32_swap_b32 {GA[0][0]}, {GA[1][0]}")
        k(f"v_permlane32_swap_b32 {GA[0][1]}, {GA[1][1]}")
        k(f"v_mul_f32 {GR[1]}, {fbits(C0)}, {t1}")
        k(f"v_mul_f32 {t2}, {t1}, {t1}"); k(f"v_mul_f32 {t2}, {t2}, {t1}"); k(f"v_mul_f32 {GR[2]}, {fbits(C1)}, {t2}")
        k(f"v_add_f32 {GA[0][0]}, {GA[0][0]}, {GA[1][0]}"); k(f"v_add_f32 {GA[0][1]}, {GA[0][1]}, {GA[1][1]}")
        k(f"s_lshl_b32 {st}, {sq}, 7"); k(f"s_add_u32 {st}, {st}, {M.CSO}")
        k(f"v_and_b32 {t0}, 31, {lane}"); k(f"v_lshl_add_u32 {t0}, {t0}, 2, {st}")
        k(f"ds_write_b32 {t0}, {GA[0][0]}"); k(f"ds_write_b32 {t0}, {GA[0][1]} offset:512")
        k(f"s_lshl_b32 {st}, {sq}, 9"); k(f"s_add_u32 {st}, {st}, {M.ROWC}")
        k(f"v_add_u32 {t0}, {st}, {t3}")
        k(f"ds_write_b128 {t0}, {GR}")
        k("s_waitcnt lgkmcnt(0)")
    gregs = [(GA[i][2], GA[i][3]) for i in range(8)] + [(GR[2], GR[3])]
    gather_issue()
    k("s_barrier")
    k("s_barrier")
    k("s_barrier")
    FK = [fx[0], fx[1]]
    kregs = [(FK[0][0], FK[0][1]), (FK[0][2], FK[0][3]), (FK[1][0], FK[1][1]), (FK[1][2], FK[1][3])]
    skf = k.s()
    k(f"s_mov_b32 {skf}, {L.FL_KV}")
    def kvpoll_issue():
        k(f"buffer_load_dwordx4 {FK[0]}, {l16}, {wsrd}, {skf} offen sc1")
        k(f"buffer_load_dwordx4 {FK[1]}, {l16}, {wsrd}, {skf} offen offset:1024 sc1")
    kvpoll_issue()
    k("s_barrier")
    k("s_waitcnt vmcnt(2)")
    tagcheck(gregs)
    k(f"s_cselect_b32 {sok[0]}, 1, 0")
    l12 = k.newlabel("b12")
    k(f"s_cbranch_scc0 {l12}")
    gather_finish()
    k.label(l12)
    k("s_barrier")
    k("s_barrier")
    def kv_dma(t_lo, n):
        k(f"s_mul_i32 {st}, {sq}, {n*1024}"); k(f"s_add_u32 {st}, {st}, {t_lo*1024}")
        k(f"s_add_u32 {st2}, {st}, {L.KVF}")
        for i in range(0, n, 4):
            k(f"s_mov_b32 m0, {st}"); k.nop(1)
            for j in range(4): k(f"buffer_load_dwordx4 {l16}, {wsrd}, {st2} offen offset:{j*1024} sc1 lds")
            k(f"s_add_u32 {st}, {st}, 4096"); k(f"s_add_u32 {st2}, {st2}, 4096")
    k("s_waitcnt vmcnt(0)")
    tagcheck(kregs)
    k(f"s_cselect_b32 {sok[1]}, 1, 0")
    l14 = k.newlabel("b14")
    k(f"s_cbranch_scc0 {l14}")
    kv_dma(0, 12)
    k.label(l14)
    def spin(issue, regs, label):
        lp = k.newlabel(label); lo = k.newlabel(label + "o")
        k(f"s_mov_b32 {sspin}, 0")
        k.label(lp)
        issue()
        k("s_waitcnt vmcnt(0)")
        tagcheck(regs)
        k(f"s_cbranch_scc1 {lo}")
        k("s_sleep 2")
        k(f"s_add_u32 {sspin}, {sspin}, 1"); k(f"s_cmp_lt_u32 {sspin}, {M.SPIN_MAX}")
        k(f"s_cbranch_scc1 {lp}")
        k.label(lo)
    lg = k.newlabel("gok")
    k(f"s_cmp_eq_u32 {sok[0]}, 1"); k(f"s_cbranch_scc1 {lg}")
    spin(gather_issue, gregs, "gsp")
    gather_finish()
    k.label(lg)
    stp(2)
    k("s_barrier")
    lk = k.newlabel("kok")
    k(f"s_cmp_eq_u32 {sok[1]}, 1"); k(f"s_cbranch_scc1 {lk}")
    spin(kvpoll_issue, kregs, "ksp")
    kv_dma(0, 12)
    k.label(lk)
    kv_dma(48, 20)
    stp(3)
    k(f"s_lshl_b32 {so}, {srb}, 1"); k(f"s_lshr_b32 {st}, {sj}, 3"); k(f"s_add_u32 {so}, {so}, {st}"); k(f"s_lshl_b32 {so}, {so}, 3")
    k(f"s_lshr_b32 {st}, {sq}, 1"); k(f"s_lshl_b32 {st}, {st}, 2"); k(f"s_add_u32 {so}, {so}, {st}")
    k(f"s_and_b32 {st}, {sj}, 3"); k(f"s_add_u32 {so}, {so}, {st}"); k(f"s_lshl_b32 {so}, {so}, 3"); k(f"s_add_u32 {so}, {so}, {L.FL_Q}")
    k(f"v_mov_b32 {t3}, 0")
    spin(lambda: k(f"buffer_load_dwordx2 {FK[0][0:2]}, {t3}, {wsrd}, {so} offen sc1"), [(FK[0][0], FK[0][1])], "qsp")
    k(f"s_lshl_b32 {so}, {srb}, 2"); k(f"s_add_u32 {so}, {so}, {sq}"); k(f"s_lshl_b32 {so}, {so}, 4"); k(f"s_add_u32 {so}, {so}, {sj}")
    k(f"s_lshl_b32 {so}, {so}, 11"); k(f"s_add_u32 {so}, {so}, {L.QF}")
    k(f"s_lshl_b32 {st}, {sq}, 11"); k(f"s_add_u32 m0, {st}, {M.QLDS}"); k.nop(1)
    k(f"buffer_load_dwordx4 {l16}, {wsrd}, {so} offen sc1 lds")
    k(f"buffer_load_dwordx4 {l16}, {wsrd}, {so} offen offset:1024 sc1 lds")
    k("s_waitcnt vmcnt(0)")
    stp(4)
    k("s_barrier")
    def bump_nonce():
        l_ = k.newlabel("nn")
        k(f"s_lshl_b32 {st}, s2, 4"); k(f"s_add_u32 {st}, {st}, {sq}")
        k(f"s_cmp_lg_u32 {st}, 0"); k(f"s_cbranch_scc1 {l_}")
        k(f"v_mov_b32 {FK[0][0]}, {tag[0]}"); k(f"v_mov_b32 {FK[0][1]}, {tag[1]}"); k(f"v_mov_b32 {t0}, 0")
        k(f"s_mov_b32 {st}, {L.NONCE}")
        k("s_mov_b64 exec, 1")
        k(f"buffer_store_dwordx2 {FK[0][0:2]}, {t0}, {wsrd}, {st} offen sc1")
        k("s_mov_b64 exec, -1")
        k.label(l_)
    bump_nonce()
    if stop == 1:
        stp(1); stp.flush(wsrd, sw, 8, 8, st, t0, t1)
        k("s_endpgm")
        return
    k("s_barrier")
    k.release(mkS)
    srt0 = k.s(); sho = k.s(); sho1 = k.s(); sdo = k.s(); sdo1 = k.s(); sring = k.s()
    k(f"s_and_b32 {st}, {sj}, 1"); k(f"s_lshl_b32 {st}, {st}, 1"); k(f"s_lshl_b32 {srt0}, {srb}, 2"); k(f"s_add_u32 {srt0}, {srt0}, {st}")
    k(f"s_mul_i32 {sho}, {srt0}, 112"); k(f"s_mul_i32 {st}, {sq}, 28"); k(f"s_add_u32 {sho}, {sho}, {st}"); k(f"s_lshl_b32 {sho}, {sho}, 10")
    k(f"s_add_u32 {sho}, {sho}, {L.HF}")
    k(f"s_add_u32 {sho1}, {sho}, {112 * 1024}")
    scb = k.s()
    k(f"s_lshr_b32 {scb}, {sj}, 1"); k(f"s_lshl_b32 {scb}, {scb}, 7")
    k(f"s_lshl_b32 {sdo}, {st}, 14"); k(f"s_add_u32 {sdo}, {sdo}, {scb}")
    k(f"s_add_u32 {sdo1}, {sdo}, {8192 - 1024}")
    k(f"s_lshl_b32 {sring}, {sq}, 13"); k(f"s_add_u32 {sring}, {sring}, {M.DRING}")
    vW = k.v(); aw = [k.v(), k.v()]; aw0 = k.v()
    k(f"v_lshrrev_b32 {t0}, 3, {lane}"); k(f"v_lshlrev_b32 {vW}, 10, {t0}")
    k(f"v_bfe_u32 {t0}, {lane}, 4, 1"); k(f"v_lshlrev_b32 {t0}, 2, {t0}")
    k(f"v_and_b32 {t1}, 7, {lane}"); k(f"v_xor_b32 {t0}, {t0}, {t1}")
    k(f"v_lshl_add_u32 {vW}, {t0}, 4, {vW}")
    k(f"v_bfe_u32 {t0}, {lane}, 2, 2"); k(f"v_lshlrev_b32 {aw0}, 7, {t0}")
    k(f"v_lshrrev_b32 {t1}, 5, {lane}"); k(f"v_lshl_add_u32 {aw0}, {t1}, 9, {aw0}")
    k(f"v_bfe_u32 {t0}, {lane}, 3, 1"); k(f"v_lshl_add_u32 {aw0}, {t0}, 6, {aw0}")
    k(f"v_bfe_u32 {t0}, {lane}, 4, 1"); k(f"v_lshl_add_u32 {aw0}, {t0}, 5, {aw0}")
    k(f"v_and_b32 {t0}, 3, {lane}"); k(f"v_lshl_add_u32 {aw0}, {t0}, 3, {aw0}")
    k(f"v_add_u32 {aw[0]}, {sring}, {aw0}")
    k(f"v_xor_b32 {aw[1]}, 64, {aw[0]}")
    DA = [[k.v(16) for ct in range(2)] for rt in range(2)]
    HB = k.v(64)
    DEP = 4
    Hf = [[HB[8*s_:8*s_+4], HB[8*s_+4:8*s_+8]] for s_ in range(DEP)]
    Wf = [k.v(4), k.v(4)]
    Gv = k.v(16)
    for rt in range(2):
        for ct in range(2):
            for i in range(16): k(f"v_mov_b32 {DA[rt][ct][i]}, 0")
    k(f"s_lshl_b32 {so}, {srb}, 1"); k(f"s_and_b32 {st}, {sj}, 1"); k(f"s_add_u32 {so}, {so}, {st}"); k(f"s_lshl_b32 {so}, {so}, 9")
    k(f"s_add_u32 {so2}, {so}, {L.FL_O}")
    k(f"s_add_u32 {so}, {so}, {L.FL_H}")
    k(f"v_min_u32 {t3}, 55, {lane}"); k(f"v_lshlrev_b32 {t3}, 3, {t3}")
    FP = Wf[0]
    spin(lambda: k(f"buffer_load_dwordx2 {FP[0:2]}, {t3}, {wsrd}, {so} offen sc1"), [(FP[0], FP[1])], "hsp")
    stp(5)
    def issue(slot):
        k(f"s_add_u32 m0, {sring}, {slot * 2048}")
        k(f"buffer_load_dwordx4 {Hf[slot][0]}, {l16}, {wsrd}, {sho} offen offset:{slot*1024} sc1")
        k(f"buffer_load_dwordx4 {vW}, {dsrd}, {sdo} offen lds")
        k(f"buffer_load_dwordx4 {vW}, {dsrd}, {sdo1} offen offset:1024 lds")
        k(f"buffer_load_dwordx4 {Hf[slot][1]}, {l16}, {wsrd}, {sho1} offen offset:{slot*1024} sc1")
        k(f"s_add_u32 {sdo}, {sdo}, 16384"); k(f"s_add_u32 {sdo1}, {sdo1}, 16384")
        if slot == DEP - 1:
            k(f"s_add_u32 {sho}, {sho}, {DEP*1024}"); k(f"s_add_u32 {sho1}, {sho1}, {DEP*1024}")
    def dstep(s_, vm):
        k(f"s_waitcnt vmcnt({vm})")
        for ct in range(2):
            k(f"ds_read_b64_tr_b16 {Wf[ct][0:2]}, {aw[ct]} offset:{s_*2048}")
            k(f"ds_read_b64_tr_b16 {Wf[ct][2:4]}, {aw[ct]} offset:{s_*2048+1024}")
        k("s_waitcnt lgkmcnt(0)")
        for rt in range(2):
            for ct in range(2):
                k(f"{MF} {DA[rt][ct]}, {Wf[ct]}, {Hf[s_][rt]}, {DA[rt][ct]}")
    for s_ in range(DEP): issue(s_)
    sit = k.s()
    k(f"s_mov_b32 {sit}, 0")
    dl = k.newlabel("dloop")
    k.label(dl)
    for s_ in range(DEP):
        dstep(s_, 4 * (DEP - 1)); issue(s_)
    k(f"s_add_u32 {sit}, {sit}, 1")
    k(f"s_cmp_lt_u32 {sit}, {28 // DEP - 1}")
    k(f"s_cbranch_scc1 {dl}")
    for s_ in range(DEP): dstep(s_, 4 * (DEP - 1 - s_))
    stp(6)
    vx = aW[0]
    sxo = k.s()
    k(f"v_and_b32 {t0}, 31, {lane}"); k(f"v_lshlrev_b32 {vx}, 10, {t0}")
    k(f"v_lshrrev_b32 {t1}, 5, {lane}"); k(f"v_lshl_add_u32 {vx}, {t1}, 3, {vx}")
    k(f"s_and_b32 {st}, {sq}, 1"); k(f"s_add_u32 {sxo}, {srt0}, {st}"); k(f"s_lshl_b32 {sxo}, {sxo}, 15"); k(f"s_add_u32 {sxo}, {sxo}, {scb}")
    k(f"s_lshr_b32 {st}, {sq}, 1"); k(f"s_lshl_b32 {st}, {st}, 6"); k(f"s_add_u32 {sxo}, {sxo}, {st}")
    k("s_setprio 3")
    k("s_barrier")
    WOL = 98304
    k(f"s_lshl_b32 {sdo}, {sq}, 17"); k(f"s_add_u32 {sdo}, {sdo}, {scb}")
    k(f"s_lshl_b32 {sring}, {sq}, 14"); k(f"s_add_u32 {sring}, {sring}, {WOL}")
    for i in range(16):
        k(f"s_add_u32 m0, {sring}, {i*1024}"); k.nop(1)
        k(f"buffer_load_dwordx4 {vW}, {wosrd}, {sdo} offen lds")
        k(f"s_add_u32 {sdo}, {sdo}, 8192")
    XCH = 32768
    def reduce4(target, nextbar):
        k(f"s_lshl_b32 {st}, {sq}, 12"); k(f"s_add_u32 {st}, {st}, {XCH}")
        k(f"v_add_u32 {t2}, {st}, {l16}")
        for d in range(4):
            for j in range(4): k(f"ds_write_b128 {t2}, {DA[d & 1][d >> 1][4*j:4*j+4]} offset:{d*16384 + j*1024}")
        k("s_waitcnt lgkmcnt(0)")
        k("s_barrier")
        k(f"s_lshl_b32 {st}, {sq}, 14"); k(f"s_add_u32 {st}, {st}, {XCH}")
        k(f"v_add_u32 {t2}, {st}, {l16}")
        for q_ in range(4):
            for j in range(4): k(f"ds_read_b128 {DA[q_ & 1][q_ >> 1][4*j:4*j+4]}, {t2} offset:{q_*4096 + j*1024}")
            if q_ == 2: k("s_waitcnt lgkmcnt(4)")
        k("s_waitcnt lgkmcnt(0)")
        for i in range(16): k(f"v_add_f32 {DA[0][0][i]}, {DA[0][0][i]}, {DA[1][0][i]}")
        for i in range(16): k(f"v_add_f32 {DA[0][1][i]}, {DA[0][1][i]}, {DA[1][1][i]}")
        for i in range(16): k(f"v_add_f32 {target[i]}, {DA[0][0][i]}, {DA[0][1][i]}")
    reduce4(Gv, None)
    T = DA[1][0]
    for i in range(16): k(f"v_mul_f32 {T[i]}, {fbits(-1.4426950408889634)}, {Gv[i]}")
    for i in range(16): k(f"v_exp_f32 {T[i]}, {T[i]}")
    for i in range(16): k(f"v_add_f32 {T[i]}, 1.0, {T[i]}")
    for i in range(16): k(f"v_rcp_f32 {T[i]}, {T[i]}")
    for i in range(16): k(f"v_mul_f32 {Gv[i]}, {Gv[i]}, {T[i]}")
    k(f"s_lshl_b32 {st}, {sq}, 7"); k(f"s_add_u32 {so2}, {so2}, {st}")
    k(f"v_lshlrev_b32 {t3}, 3, {r16}")
    k(f"v_add_u32 {aw[0]}, {sring}, {aw0}")
    k(f"v_xor_b32 {aw[1]}, 64, {aw[0]}")
    k(f"s_lshl_b32 {sho}, {srt0}, 5"); k(f"s_lshl_b32 {st}, {sq}, 3"); k(f"s_add_u32 {sho}, {sho}, {st}"); k(f"s_lshl_b32 {sho}, {sho}, 10")
    k(f"s_add_u32 {sho}, {sho}, {L.OF}"); k(f"s_add_u32 {sho1}, {sho}, 32768")
    spin(lambda: k(f"buffer_load_dwordx2 {FP[0:2]}, {t3}, {wsrd}, {so2} offen sc1"), [(FP[0], FP[1])], "osp")
    stp(7)
    for s_ in range(8):
        if s_ == 4: k(f"s_add_u32 {sho}, {sho}, 4096"); k(f"s_add_u32 {sho1}, {sho1}, 4096")
        k(f"buffer_load_dwordx4 {HB[8*s_:8*s_+4]}, {l16}, {wsrd}, {sho} offen offset:{(s_&3)*1024} sc1")
        k(f"buffer_load_dwordx4 {HB[8*s_+4:8*s_+8]}, {l16}, {wsrd}, {sho1} offen offset:{(s_&3)*1024} sc1")
    k("s_barrier")
    for s_ in range(8):
        for ct in range(2):
            k(f"ds_read_b64_tr_b16 {Wf[ct][0:2]}, {aw[ct]} offset:{s_*2048}")
            k(f"ds_read_b64_tr_b16 {Wf[ct][2:4]}, {aw[ct]} offset:{s_*2048+1024}")
        k(f"s_waitcnt vmcnt({14 - 2*s_}) lgkmcnt(0)")
        for rt in range(2):
            for ct in range(2):
                k(f"{MF} {DA[rt][ct]}, {Wf[ct]}, {HB[8*s_+4*rt:8*s_+4*rt+4]}, {DA[rt][ct] if s_ else 0}")
    XR_ = HB[0:8]
    for g4 in range(4): k(f"buffer_load_dwordx2 {XR_[2*g4:2*g4+2]}, {vx}, {xsrd}, {sxo} offen offset:{16*g4}")
    k.nop(8)
    Sv = HB[16:32]
    reduce4(Sv, None)
    k("s_waitcnt vmcnt(0)")
    for i in range(8):
        k(f"v_lshlrev_b32 {T[2*i]}, 16, {XR_[i]}"); k(f"v_and_b32 {T[2*i+1]}, 0xffff0000, {XR_[i]}")
    for i in range(16): k(f"v_fma_f32 {Sv[i]}, {Sv[i]}, {Gv[i]}, {T[i]}")
    for i in range(8): k(f"v_cvt_pk_bf16_f32 {XR_[i]}, {Sv[2*i]}, {Sv[2*i+1]}")
    for g4 in range(4): k(f"buffer_store_dwordx2 {XR_[2*g4:2*g4+2]}, {vx}, {outsrd}, {sxo} offen offset:{16*g4}")
    if stp.regs:
        k("s_waitcnt vmcnt(0)")
        stp(1); stp.flush(wsrd, sw, 8, 8, st, t0, t1)
    k("s_endpgm")
```

```python
from asm import *
import layout as L
import struct
def fbits(x): return "0x%08x" % struct.unpack("<I", struct.pack("<f", x))[0]
MF16 = "v_mfma_f32_16x16x32_bf16"
C0 = -2.0 * 0.7978845608028654 * 1.4426950408889634
C1 = C0 * 0.044715
SLOT = 24576
XO, GO, UO, QO = 0, 8192, 15360, 22528
KVW = 4 * SLOT
ROWC = 0
CSO = ROWC + 2048
P1_LDS = KVW + 16384

def emit_map(k, srb, scg, tmp, mode="8x4"):
    if mode == "8x4":
        k(f"s_and_b32 {srb}, s2, 1"); k(f"s_lshl_b32 {srb}, {srb}, 3")
        k(f"s_bfe_u32 {tmp}, s2, 0x30003"); k(f"s_add_u32 {srb}, {srb}, {tmp}")
        k(f"s_bfe_u32 {scg}, s2, 0x20001"); k(f"s_lshl_b32 {scg}, {scg}, 2")
        k(f"s_lshr_b32 {tmp}, s2, 6"); k(f"s_add_u32 {scg}, {scg}, {tmp}")
    elif mode == "4x8":
        k(f"s_and_b32 {srb}, s2, 3"); k(f"s_lshl_b32 {srb}, {srb}, 2")
        k(f"s_bfe_u32 {tmp}, s2, 0x20003"); k(f"s_add_u32 {srb}, {srb}, {tmp}")
        k(f"s_bfe_u32 {scg}, s2, 0x10002"); k(f"s_lshl_b32 {scg}, {scg}, 3")
        k(f"s_lshr_b32 {tmp}, s2, 5"); k(f"s_add_u32 {scg}, {scg}, {tmp}")
    elif mode == "2x16":
        k(f"s_and_b32 {srb}, s2, 7"); k(f"s_lshl_b32 {srb}, {srb}, 1")
        k(f"s_bfe_u32 {tmp}, s2, 0x10003"); k(f"s_add_u32 {srb}, {srb}, {tmp}")
        k(f"s_lshr_b32 {scg}, s2, 4")
    else:
        k(f"s_lshr_b32 {srb}, s2, 4"); k(f"s_and_b32 {scg}, s2, 15")

def red_kg(k, v, t):
    k(f"v_mov_b32 {t}, {v}"); k.nop(2)
    k(f"v_permlane32_swap_b32 {v}, {t}"); k.nop(2)
    k(f"v_add_f32 {v}, {v}, {t}")
    k(f"v_mov_b32 {t}, {v}"); k.nop(2)
    k(f"v_permlane16_swap_b32 {v}, {t}"); k.nop(2)
    k(f"v_add_f32 {v}, {v}, {t}")

def p1_kernel(name, stamps=0, kidx=0, mapmode="8x4", var=0):
    k = Kernel(name, 256, 512, P1_LDS)
    lend = k.newlabel("end")
    k("s_cmp_ge_u32 s2, 256")
    k(f"s_cbranch_scc1 {lend}")
    px = k.s(2); pq = k.s(2); pk = k.s(2); pv = k.s(2); pg = k.s(4); ws = k.s(2)
    assert pq.base == px.base + 2 and pk.base == px.base + 4 and px.base % 4 == 0
    k(f"s_load_dwordx8 s[{px.base}:{px.base+7}], s[0:1], 0")
    k(f"s_load_dwordx4 {pg}, s[0:1], 48")
    k(f"s_load_dwordx2 {ws}, s[0:1], 88")
    stp = Stamper(k, kidx, stamps)
    stp.stamp(0)
    lane = k.v(); t0 = k.v(); t1 = k.v(); t2 = k.v(); t3 = k.v()
    sw = k.s(); sa = k.s(); sb = k.s(); srb = k.s(); scg = k.s(); st = k.s(); st2 = k.s()
    k(f"v_lshrrev_b32 {t0}, 6, v0")
    k(f"v_and_b32 {lane}, 63, v0")
    k(f"v_readfirstlane_b32 {sw}, {t0}")
    emit_map(k, srb, scg, st, mapmode)
    k(f"s_lshr_b32 {sa}, {sw}, 2")
    k(f"s_and_b32 {sb}, {sw}, 3")
    vA = k.v(); vB = k.v(); vC = k.v(); vKV = k.v()
    k(f"v_lshrrev_b32 {t0}, 2, {lane}")
    k(f"v_lshlrev_b32 {vA}, 10, {t0}")
    k(f"v_lshrrev_b32 {t1}, 4, {lane}")
    k(f"v_and_b32 {t1}, 2, {t1}")
    k(f"v_and_b32 {t2}, 3, {lane}")
    k(f"v_xor_b32 {t1}, {t1}, {t2}")
    k(f"v_lshl_add_u32 {vA}, {t1}, 4, {vA}")
    def swap23(dst, src, ta, tb):
        k(f"v_and_b32 {dst}, 0x13, {src}")
        k(f"v_and_b32 {ta}, 4, {src}")
        k(f"v_lshl_or_b32 {dst}, {ta}, 1, {dst}")
        k(f"v_and_b32 {ta}, 8, {src}")
        k(f"v_lshrrev_b32 {ta}, 1, {ta}")
        k(f"v_or_b32 {dst}, {ta}, {dst}")
    k(f"s_lshl_b32 {st}, {sw}, 6")
    k(f"v_add_u32 {t0}, {st}, {lane}")
    k(f"v_mul_u32_u24 {t1}, 4682, {t0}")
    k(f"v_lshrrev_b32 {t1}, 16, {t1}")
    k(f"v_mul_u32_u24 {t2}, 14, {t1}")
    k(f"v_sub_u32 {t0}, {t0}, {t2}")
    swap23(t2, t1, t3, None)
    k(f"v_mul_u32_u24 {vB}, 3584, {t2}")
    k(f"v_lshl_add_u32 {vB}, {t0}, 4, {vB}")
    k(f"v_mov_b32 {vC}, {vB}")
    lq = k.newlabel("notq")
    k(f"s_cmp_lg_u32 {sw}, 7")
    k(f"s_cbranch_scc1 {lq}")
    k(f"v_lshrrev_b32 {t1}, 2, {lane}")
    swap23(t2, t1, t3, None)
    k(f"v_lshlrev_b32 {vB}, 10, {t2}")
    k(f"v_lshrrev_b32 {t0}, 3, {lane}")
    k(f"v_and_b32 {t0}, 2, {t0}")
    k(f"v_and_b32 {t1}, 3, {lane}")
    k(f"v_xor_b32 {t0}, {t0}, {t1}")
    k(f"v_lshl_add_u32 {vB}, {t0}, 4, {vB}")
    k(f"v_add_u32 {vC}, 16384, {vB}")
    k.label(lq)
    k(f"v_lshrrev_b32 {t1}, 1, {lane}")
    swap23(t2, t1, t3, None)
    k(f"v_lshlrev_b32 {vKV}, 5, {t2}")
    k(f"v_and_b32 {t0}, 1, {lane}")
    k(f"v_lshl_add_u32 {vKV}, {t0}, 4, {vKV}")
    k("s_waitcnt lgkmcnt(0)")
    xsrd = k.srd(px, 2048 * 1024)
    srdB = k.s(4); srdC = k.s(4); srdK = k.s(4)
    sAo = k.s(); sBo = k.s(); sBinc = k.s(); sldA = k.s(); sldB = k.s(); sldC = k.s()
    k(f"s_mov_b32 {srdB[2]}, {512*3584}")
    k(f"s_mov_b32 {sBinc}, {32*3584}")
    k(f"s_mov_b32 {sldB}, {GO}")
    k(f"s_mov_b32 {sldC}, {UO}")
    k(f"s_cmp_eq_u32 {sw}, 7")
    k(f"s_cselect_b64 {srdB[0:2]}, {pq}, {pg[0:2]}")
    k(f"s_cselect_b64 {srdC[0:2]}, {pq}, {pg[2:4]}")
    k(f"s_cselect_b32 {srdB[2]}, {512*1024}, {srdB[2]}")
    k(f"s_cselect_b32 {sBinc}, 32768, {sBinc}")
    k(f"s_cselect_b32 {st}, 64, 224")
    k(f"s_cselect_b32 {sldB}, {QO - 7*1024}, {sldB}")
    k(f"s_cselect_b32 {sldC}, {QO + 1024 - 7*1024}, {sldC}")
    k(f"s_and_b32 {srdB[1]}, {srdB[1]}, 0xffff")
    k(f"s_and_b32 {srdC[1]}, {srdC[1]}, 0xffff")
    k(f"s_mov_b32 {srdC[2]}, {srdB[2]}")
    k(f"s_mov_b32 {srdB[3]}, 0x20000")
    k(f"s_mov_b32 {srdC[3]}, 0x20000")
    k(f"s_mul_i32 {sBo}, {scg}, {st}")
    k(f"s_lshl_b32 {sldA}, {sw}, 10")
    k(f"s_add_u32 {sldB}, {sldB}, {sldA}")
    k(f"s_add_u32 {sldC}, {sldC}, {sldA}")
    k(f"s_lshl_b32 {sAo}, {srb}, 17")
    k(f"s_lshl_b32 {st}, {sw}, 14")
    k(f"s_add_u32 {sAo}, {sAo}, {st}")
    k(f"s_bitcmp1_b32 {scg}, 0")
    k(f"s_cselect_b64 {srdK[0:2]}, {pv}, {pk}")
    k(f"s_and_b32 {srdK[1]}, {srdK[1]}, 0xffff")
    k(f"s_mov_b32 {srdK[2]}, 16384")
    k(f"s_mov_b32 {srdK[3]}, 0x20000")
    def dma_stage(slot):
        k(f"s_add_u32 m0, {sldA}, {slot*SLOT}"); k.nop(1)
        k(f"buffer_load_dwordx4 {vA}, {xsrd}, {sAo} offen lds")
        k(f"s_add_u32 m0, {sldB}, {slot*SLOT}"); k(f"s_add_u32 {sAo}, {sAo}, 64")
        k(f"buffer_load_dwordx4 {vB}, {srdB}, {sBo} offen lds")
        k(f"s_add_u32 m0, {sldC}, {slot*SLOT}"); k.nop(1)
        k(f"buffer_load_dwordx4 {vC}, {srdC}, {sBo} offen lds")
        k(f"s_add_u32 {sBo}, {sBo}, {sBinc}")
    if var & 32:
        pf = k.v(4); gsr = k.srd(pg[0:2], 512*3584); usr = k.srd(pg[2:4], 512*3584); qsr = k.srd(pq, 512*1024)
        k(f"s_lshr_b32 {st}, s2, 3"); k(f"s_lshl_b32 {st}, {st}, 3"); k(f"s_add_u32 {st}, {st}, {sw}")
        k(f"s_and_b32 {st2}, s2, 1"); k(f"s_lshl_b32 {st2}, {st2}, 8"); k(f"s_add_u32 {st2}, {st2}, {st}"); k(f"s_lshl_b32 {st2}, {st2}, 12")
        k(f"v_lshlrev_b32 {t0}, 6, {lane}")
        dma_stage(0)
        k(f"buffer_load_dword {pf[0]}, {t0}, {xsrd}, {st2} offen")
        k(f"v_and_b32 {t1}, 15, {lane}"); k(f"v_min_u32 {t1}, 13, {t1}"); k(f"v_lshlrev_b32 {t1}, 6, {t1}")
        k(f"v_bfe_u32 {t2}, {lane}, 4, 1"); k(f"v_mul_u32_u24 {t2}, 3584, {t2}"); k(f"v_add_u32 {t1}, {t1}, {t2}")
        k(f"s_mul_i32 {st2}, {st}, 7168")
        k(f"s_bfe_u32 {sBinc}, s2, 0x20001"); k(f"s_mul_i32 {sBinc}, {sBinc}, 896"); k(f"s_add_u32 {st2}, {st2}, {sBinc}")
        k(f"s_mov_b64 exec, 0xffffffff")
        k(f"buffer_load_dword {pf[1]}, {t1}, {gsr}, {st2} offen")
        k(f"buffer_load_dword {pf[2]}, {t1}, {usr}, {st2} offen")
        k(f"s_mov_b64 exec, -1")
        k(f"v_and_b32 {t1}, 3, {lane}"); k(f"v_lshlrev_b32 {t1}, 6, {t1}")
        k(f"v_bfe_u32 {t2}, {lane}, 2, 1"); k(f"v_lshl_add_u32 {t1}, {t2}, 10, {t1}")
        k(f"s_lshl_b32 {st2}, {st}, 11")
        k(f"s_bfe_u32 {sBinc}, s2, 0x20001"); k(f"s_lshl_b32 {sBinc}, {sBinc}, 8"); k(f"s_add_u32 {st2}, {st2}, {sBinc}")
        k(f"s_mov_b64 exec, 0xff")
        k(f"buffer_load_dword {pf[3]}, {t1}, {qsr}, {st2} offen")
        k(f"s_mov_b64 exec, -1")
        k(f"s_mov_b32 {sBinc}, {32*3584}")
        k(f"s_cmp_eq_u32 {sw}, 7")
        k(f"s_cselect_b32 {sBinc}, 32768, {sBinc}")
    else:
        dma_stage(0)
    k(f"s_lshl_b32 {st}, {sw}, 11")
    k(f"s_add_u32 m0, {st}, {KVW}"); k.nop(1)
    k(f"buffer_load_dwordx4 {vKV}, {srdK}, {st} offen lds")
    k(f"buffer_load_dwordx4 {vKV}, {srdK}, {st} offen offset:1024 lds")
    for s in range(1, 4): dma_stage(s)
    aX = [[k.v() for _ in range(4)] for _ in range(2)]
    aW0 = [k.v() for _ in range(2)]
    aW1 = [[k.v() for _ in range(4)] for _ in range(2)]
    aKx = [k.v() for _ in range(2)]; aKw = k.v()
    r16 = k.v(); kg = k.v(); irow = k.v(); cq8 = k.v()
    k(f"v_and_b32 {r16}, 15, {lane}")
    k(f"v_lshrrev_b32 {kg}, 4, {lane}")
    k(f"v_lshrrev_b32 {t0}, 2, {r16}")
    k(f"v_and_b32 {t0}, 2, {t0}")
    k(f"v_xor_b32 {t0}, {t0}, {kg}")
    k(f"v_lshlrev_b32 {t0}, 4, {t0}")
    k(f"v_lshl_add_u32 {t0}, {r16}, 6, {t0}")
    stile = [k.s() for _ in range(4)]
    for i in range(4):
        k(f"s_add_u32 {st}, {sb}, {i}"); k(f"s_and_b32 {st}, {st}, 3")
        k(f"s_lshl_b32 {st2}, {sa}, 2"); k(f"s_add_u32 {stile[i]}, {st}, {st2}")
        k(f"s_lshl_b32 {st}, {stile[i]}, 10")
        k(f"v_add_u32 {aX[0][i]}, {st}, {t0}")
        k(f"v_add_u32 {aX[1][i]}, {2*SLOT}, {aX[0][i]}")
    k(f"s_lshr_b32 {st}, {scg}, 1"); k(f"s_lshl_b32 {st}, {st}, 10")
    k(f"v_add_u32 {aKx[0]}, {st}, {t0}")
    k(f"v_add_u32 {aKx[1]}, {2*SLOT}, {aKx[0]}")
    k(f"v_lshrrev_b32 {t0}, 1, {kg}"); k(f"v_lshlrev_b32 {irow}, 4, {t0}")
    k(f"v_and_b32 {t0}, 1, {kg}"); k(f"v_lshl_add_u32 {irow}, {t0}, 2, {irow}")
    k(f"v_lshrrev_b32 {t1}, 2, {r16}"); k(f"v_add_u32 {irow}, {irow}, {t1}")
    k(f"v_and_b32 {cq8}, 3, {lane}"); k(f"v_lshlrev_b32 {cq8}, 3, {cq8}")
    sp0 = k.s(); sp1 = k.s()
    k(f"s_lshl_b32 {st}, {sb}, 1")
    k(f"s_add_u32 {sp0}, {st}, {sa}")
    k(f"s_xor_b32 {sp1}, {sp0}, 1")
    k(f"s_cmp_eq_u32 {sb}, 3")
    k(f"s_cselect_b32 {sp0}, 6, {sp0}")
    k(f"s_cselect_b32 {sp1}, 7, {sp1}")
    k(f"v_mul_u32_u24 {t1}, 224, {irow}")
    k(f"v_add_u32 {t1}, {t1}, {cq8}")
    k(f"v_add_u32 {t1}, {GO}, {t1}")
    k(f"s_lshl_b32 {st}, {sp0}, 5")
    k(f"v_add_u32 {aW0[0]}, {st}, {t1}")
    k(f"v_add_u32 {aW0[1]}, {2*SLOT}, {aW0[0]}")
    k(f"s_lshl_b32 {st}, {sp1}, 5")
    k(f"v_add_u32 {aW1[0][0]}, {st}, {t1}")
    k(f"v_add_u32 {aW1[0][1]}, 1792, {aW1[0][0]}")
    k(f"v_add_u32 {aW1[0][2]}, 7168, {aW1[0][0]}")
    k(f"v_add_u32 {aW1[0][3]}, 8960, {aW1[0][0]}")
    lq2 = k.newlabel("notq2")
    k(f"s_cmp_lg_u32 {sb}, 3")
    k(f"s_cbranch_scc1 {lq2}")
    k(f"v_lshl_add_u32 {t1}, {irow}, 6, {cq8}")
    k(f"v_add_u32 {t1}, {QO}, {t1}")
    k(f"v_lshl_add_u32 {aW1[0][0]}, {t0}, 5, {t1}")
    k(f"v_add_u32 {aW1[0][1]}, 512, {aW1[0][0]}")
    k(f"v_xor_b32 {aW1[0][2]}, 32, {aW1[0][0]}")
    k(f"v_add_u32 {aW1[0][3]}, 512, {aW1[0][2]}")
    k.label(lq2)
    for j in range(4): k(f"v_add_u32 {aW1[1][j]}, {2*SLOT}, {aW1[0][j]}")
    k(f"v_lshl_add_u32 {aKw}, {irow}, 5, {cq8}")
    k(f"v_add_u32 {aKw}, {KVW}, {aKw}")
    acc = [[k.v(4) for T in range(4)] for i in range(4)]
    fX = [[k.v(4) for i in range(4)] for _ in range(2)]
    fW = [[k.v(4) for T in range(4)] for _ in range(2)]
    kvx = k.v(4); kvw = k.v(4); kvacc = k.v(4)
    ssum = k.v(4); ssq = k.v(4); cs = [k.v(4) for _ in range(4)]; cskv = k.v(4); ones = k.v(4)
    for i in range(4):
        for T in range(4):
            for r in range(4): k(f"v_mov_b32 {acc[i][T][r]}, 0")
    for r in range(4): k(f"v_mov_b32 {kvacc[r]}, 0")
    for v_ in [ssum, ssq, cskv] + cs:
        for r in range(4): k(f"v_mov_b32 {v_[r]}, 0")
    for r in range(4): k(f"v_mov_b32 {ones[r]}, 0x3f803f80")
    srole = k.s()
    k(f"s_and_b32 {srole}, {scg}, 1"); k(f"s_add_u32 {srole}, {srole}, 1")
    k(f"s_cmp_eq_u32 {sw}, 7"); k(f"s_cselect_b32 {srole}, {srole}, 0")
    def reads(slot, fb):
        h = slot >> 1; o = (slot & 1) * SLOT
        R = []
        for i in range(4): R.append(f"ds_read_b128 {fX[fb][i]}, {aX[h][i]} offset:{o}")
        W = []
        W.append(f"ds_read_b64_tr_b16 {fW[fb][0][0:2]}, {aW0[h]} offset:{o}")
        W.append(f"ds_read_b64_tr_b16 {fW[fb][0][2:4]}, {aW0[h]} offset:{o+1792}")
        W.append(f"ds_read_b64_tr_b16 {fW[fb][1][0:2]}, {aW0[h]} offset:{o+7168}")
        W.append(f"ds_read_b64_tr_b16 {fW[fb][1][2:4]}, {aW0[h]} offset:{o+8960}")
        W.append(f"ds_read_b64_tr_b16 {fW[fb][2][0:2]}, {aW1[h][0]} offset:{o}")
        W.append(f"ds_read_b64_tr_b16 {fW[fb][2][2:4]}, {aW1[h][1]} offset:{o}")
        W.append(f"ds_read_b64_tr_b16 {fW[fb][3][0:2]}, {aW1[h][2]} offset:{o}")
        W.append(f"ds_read_b64_tr_b16 {fW[fb][3][2:4]}, {aW1[h][3]} offset:{o}")
        return [R[0], W[0], W[1], R[1], W[2], W[3], R[2], W[4], W[5], R[3], W[6], W[7]]
    def kv_reads(slot, u):
        h = slot >> 1; o = (slot & 1) * SLOT
        k(f"ds_read_b128 {kvx}, {aKx[h]} offset:{o}")
        k(f"ds_read_b64_tr_b16 {kvw[0:2]}, {aKw} offset:{u*1024}")
        k(f"ds_read_b64_tr_b16 {kvw[2:4]}, {aKw} offset:{u*1024+256}")
    k("s_waitcnt vmcnt(9)")
    k("s_barrier")
    stp.stamp(2)
    for r in reads(0, 0): k(r)
    kv_reads(0, 0)
    side = []
    def stage(u, vm, do_dma, do_read):
        fb = u & 1
        k(f"s_waitcnt vmcnt({vm}) lgkmcnt(0)" if vm is not None else "s_waitcnt lgkmcnt(0)")
        if do_read: k("s_barrier")
        R = reads((u + 1) % 4, fb ^ 1) if do_read else []
        D = {3: f"{MF16} {ssum}, {ones}, {fX[fb][0]}, {ssum}",
             7: f"{MF16} {ssq}, {fX[fb][0]}, {fX[fb][0]}, {ssq}",
             11: f"{MF16} {cs[0]}, {fW[fb][0]}, {ones}, {cs[0]}",
             15: f"{MF16} {cs[1]}, {fW[fb][1]}, {ones}, {cs[1]}"}
        j = 0
        for i in range(4):
            for T in range(4):
                if not var & 4: k(f"{MF16} {acc[i][T]}, {fW[fb][T]}, {fX[fb][i]}, {acc[i][T]}")
                if j < len(R) and not var & 8: k(R[j])
                if not var & 2 and j in D: k(D[j])
                if j == 1 and do_dma and not var & 1: dma_stage(u)
                if j == 13:
                    ls = k.newlabel("side"); lb = k.newlabel("back")
                    k(f"s_cmp_lg_u32 {srole}, 0")
                    k(f"s_cbranch_scc1 {ls}")
                    k.label(lb)
                    side.append((ls, lb, u, fb, do_read))
                j += 1
    sit = k.s()
    k(f"s_mov_b32 {sit}, 0")
    loop = k.newlabel("loop")
    k(".p2align 6")
    k.label(loop)
    for u in range(4): stage(u, 6, True, True)
    k(f"s_add_u32 {sit}, {sit}, 1")
    k(f"v_add_u32 {aKw}, 4096, {aKw}")
    k(f"s_cmp_lt_u32 {sit}, 3")
    k(f"s_cbranch_scc1 {loop}")
    stage(0, 6, False, True); stage(1, 3, False, True); stage(2, 0, False, True); stage(3, None, False, False)
    stp.stamp(3)
    k.nop(8)
    rc = k.v(4)
    r16x16 = k.v(); kg16 = k.v()
    k(f"v_lshlrev_b32 {r16x16}, 4, {r16}")
    k(f"v_lshlrev_b32 {kg16}, 4, {kg}")
    k(f"v_and_b32 {t1}, 3, {r16}")
    k(f"v_cmp_eq_u32 vcc, 1, {t1}"); k.nop(2)
    k(f"v_cndmask_b32 {t0}, {ssq[0]}, {ssq[1]}, vcc")
    k(f"v_cmp_eq_u32 vcc, 2, {t1}"); k.nop(2)
    k(f"v_cndmask_b32 {t0}, {t0}, {ssq[2]}, vcc")
    k(f"v_cmp_eq_u32 vcc, 3, {t1}"); k.nop(2)
    k(f"v_cndmask_b32 {t0}, {t0}, {ssq[3]}, vcc")
    k(f"v_mul_f32 {rc[0]}, {fbits(-1.0/512)}, {ssum[0]}")
    k(f"v_mul_f32 {t0}, {fbits(1.0/512)}, {t0}")
    k(f"v_fma_f32 {t0}, -{rc[0]}, {rc[0]}, {t0}")
    k(f"v_max_f32 {t0}, 0, {t0}")
    k(f"v_add_f32 {rc[3]}, {fbits(1e-5)}, {t0}")
    k(f"v_rsq_f32 {t1}, {rc[3]}")
    k(f"v_lshrrev_b32 {t3}, 2, {r16}")
    k(f"v_mul_f32 {rc[1]}, {fbits(C0)}, {t1}")
    k(f"v_mul_f32 {t2}, {t1}, {t1}")
    k(f"v_mul_f32 {t2}, {t2}, {t1}")
    k(f"v_mul_f32 {rc[2]}, {fbits(C1)}, {t2}")
    k(f"s_lshl_b32 {st}, {stile[0]}, 8")
    k(f"v_add_u32 {t0}, {st}, {r16x16}")
    k(f"v_cmp_eq_u32 vcc, {t3}, {kg}")
    sv = k.s(2)
    k(f"s_and_saveexec_b64 {sv}, vcc")
    k(f"ds_write_b128 {t0}, {rc} offset:{ROWC}")
    k(f"s_mov_b64 exec, {sv}")
    k(f"s_lshl_b32 {st}, {sp0}, 7")
    k(f"v_add_u32 {t0}, {st}, {kg16}")
    k(f"v_cmp_eq_u32 vcc, 0, {r16}")
    k(f"s_and_saveexec_b64 {sv}, vcc")
    k(f"ds_write_b128 {t0}, {cs[0]} offset:{CSO}")
    k(f"ds_write_b128 {t0}, {cs[1]} offset:{CSO+64}")
    lnr = k.newlabel("norole")
    k(f"s_cmp_eq_u32 {srole}, 0")
    k(f"s_cbranch_scc1 {lnr}")
    k(f"ds_write_b128 {kg16}, {cs[2]} offset:{CSO + 14*64}")
    k(f"ds_write_b128 {kg16}, {cs[3]} offset:{CSO + 15*64}")
    k.label(lnr)
    k(f"s_mov_b64 exec, {sv}")
    k("s_waitcnt lgkmcnt(0)")
    k("s_barrier")
    RC = fX[0]
    CS = fW[0]
    for i in range(4):
        k(f"s_lshl_b32 {st}, {stile[i]}, 8")
        k(f"v_add_u32 {t0}, {st}, {r16x16}")
        k(f"ds_read_b128 {RC[i]}, {t0} offset:{ROWC}")
    k(f"s_lshl_b32 {st}, {sp0}, 7")
    k(f"v_add_u32 {t0}, {st}, {kg16}")
    k(f"ds_read_b128 {CS[0]}, {t0} offset:{CSO}")
    k(f"ds_read_b128 {CS[1]}, {t0} offset:{CSO+64}")
    k(f"s_lshl_b32 {st}, {sp1}, 7")
    k(f"v_add_u32 {t0}, {st}, {kg16}")
    k(f"ds_read_b128 {CS[2]}, {t0} offset:{CSO}")
    k(f"ds_read_b128 {CS[3]}, {t0} offset:{CSO+64}")
    hsrd = k.srd(ws, 64 * 112 * 1024, L.HF, r=srdB)
    qsrd = k.srd(ws, 0x200000, L.QF, r=srdC)
    kvsrd = k.srd(ws, 0x20000, L.KVF, r=srdK)
    vst = k.v()
    k(f"v_and_b32 {t0}, 1, {kg}"); k(f"v_lshl_add_u32 {vst}, {t0}, 9, {r16x16}")
    k(f"v_lshrrev_b32 {t0}, 1, {kg}"); k(f"v_lshl_add_u32 {vst}, {t0}, 3, {vst}")
    srt = [k.s() for _ in range(4)]
    sodd = [k.s() for _ in range(4)]
    for i in range(4):
        k(f"s_lshr_b32 {srt[i]}, {stile[i]}, 1"); k(f"s_lshl_b32 {st}, {srb}, 2"); k(f"s_add_u32 {srt[i]}, {srt[i]}, {st}")
        k(f"s_and_b32 {sodd[i]}, {stile[i]}, 1"); k(f"s_lshl_b32 {sodd[i]}, {sodd[i]}, 8")
    sfs = k.s(); so = k.s()
    k("s_waitcnt lgkmcnt(0)")
    tm = [fX[1][j//2][2*(j&1):2*(j&1)+2] for j in range(6)]
    outp = [fX[1][3][0:2], fX[1][3][2:4]]
    def geglu(lp, sp):
        k(f"s_mul_i32 {sfs}, {scg}, 7"); k(f"s_add_u32 {sfs}, {sfs}, {sp}")
        for i in range(4):
            G = acc[i][2*lp]; U = acc[i][2*lp+1]; rcv = RC[i]; o = outp[i & 1]
            for hlf in range(2):
                g = G[2*hlf:2*hlf+2]; u = U[2*hlf:2*hlf+2]
                w_, z_ = tm[3*hlf], tm[3*hlf+1]
                k(f"v_pk_fma_f32 {g}, {CS[2*lp][2*hlf:2*hlf+2]}, {rcv[0:2]}, {g} op_sel_hi:[1,0,1]")
                k(f"v_pk_fma_f32 {u}, {CS[2*lp+1][2*hlf:2*hlf+2]}, {rcv[0:2]}, {u} op_sel_hi:[1,0,1]")
                k(f"v_pk_mul_f32 {w_}, {g}, {g}")
                k(f"v_pk_fma_f32 {w_}, {w_}, {rcv[2:4]}, {rcv[0:2]} op_sel:[0,0,1] op_sel_hi:[1,0,1]")
                k(f"v_pk_mul_f32 {z_}, {w_}, {g}")
                k(f"v_pk_mul_f32 {u}, {u}, {g}")
                k(f"v_exp_f32 {z_[0]}, {z_[0]}")
                k(f"v_exp_f32 {z_[1]}, {z_[1]}")
            for hlf in range(2):
                z_ = tm[3*hlf+1]
                k(f"v_pk_fma_f32 {z_}, {z_}, {rcv[2:4]}, {rcv[2:4]} op_sel:[0,1,1] op_sel_hi:[1,1,1]")
                k(f"v_rcp_f32 {z_[0]}, {z_[0]}")
                k(f"v_rcp_f32 {z_[1]}, {z_[1]}")
            k(f"s_mul_i32 {so}, {srt[i]}, 112"); k(f"s_add_u32 {so}, {so}, {sfs}")
            for hlf in range(2):
                u = U[2*hlf:2*hlf+2]; z_ = tm[3*hlf+1]
                k(f"v_pk_mul_f32 {u}, {u}, {z_}")
            k(f"s_lshl_b32 {so}, {so}, 10"); k(f"s_add_u32 {so}, {so}, {sodd[i]}")
            for hlf in range(2):
                k(f"v_cvt_pk_bf16_f32 {o[hlf]}, {U[2*hlf]}, {U[2*hlf+1]}")
            k(f"buffer_store_dwordx2 {o}, {vst}, {hsrd}, {so} offen")
    geglu(0, sp0)
    lqe = k.newlabel("qepi"); ldone = k.newlabel("done")
    k(f"s_cmp_eq_u32 {sb}, 3")
    k(f"s_cbranch_scc1 {lqe}")
    geglu(1, sp1)
    k(f"s_branch {ldone}")
    k.label(lqe)
    for i in range(4):
        rcv = RC[i]
        k(f"v_mul_f32 {tm[0][0]}, {fbits(L.QSCALE / C0)}, {rcv[1]}")
        for T in (2, 3):
            A = acc[i][T]; o = outp[T & 1]
            for hlf in range(2):
                g = A[2*hlf:2*hlf+2]
                k(f"v_pk_fma_f32 {g}, {CS[T][2*hlf:2*hlf+2]}, {rcv[0:2]}, {g} op_sel_hi:[1,0,1]")
                k(f"v_pk_mul_f32 {g}, {g}, {tm[0]} op_sel_hi:[1,0]")
            k(f"s_lshl_b32 {so}, {srt[i]}, 4"); k(f"s_add_u32 {so}, {so}, {scg}"); k(f"s_lshl_b32 {so}, {so}, 11")
            k(f"s_add_u32 {so}, {so}, {sodd[i]}")
            for hlf in range(2):
                k(f"v_cvt_pk_bf16_f32 {o[hlf]}, {A[2*hlf]}, {A[2*hlf+1]}")
            k(f"buffer_store_dwordx2 {o}, {vst}, {qsrd}, {so} offen offset:{(T-2)*1024}")
    k(f"s_cmp_eq_u32 {srole}, 0")
    k(f"s_cbranch_scc1 {ldone}")
    skt = k.s(); stt = k.s()
    k(f"s_lshr_b32 {stt}, {scg}, 1")
    k(f"s_lshr_b32 {skt}, {scg}, 2"); k(f"s_lshl_b32 {st}, {srb}, 2"); k(f"s_add_u32 {skt}, {skt}, {st}")
    k(f"s_lshl_b32 {skt}, {skt}, 11")
    lv = k.newlabel("vepi")
    k(f"s_cmp_eq_u32 {srole}, 2")
    k(f"s_cbranch_scc1 {lv}")
    k(f"s_lshl_b32 {st}, {stt}, 8")
    k(f"v_add_u32 {t0}, {st}, {r16x16}")
    k(f"ds_read_b128 {RC[0]}, {t0} offset:{ROWC}")
    k("s_waitcnt lgkmcnt(0)")
    k(f"v_mul_f32 {t1}, {fbits(1.0 / C0)}, {RC[0][1]}")
    for r in range(4):
        k(f"v_fma_f32 {kvacc[r]}, {cskv[r]}, {RC[0][0]}, {kvacc[r]}")
        k(f"v_mul_f32 {kvacc[r]}, {kvacc[r]}, {t1}")
    k(f"s_and_b32 {st}, {stt}, 1"); k(f"s_lshl_b32 {st}, {st}, 8"); k(f"s_add_u32 {skt}, {skt}, {st}")
    k(f"v_cvt_pk_bf16_f32 {outp[0][0]}, {kvacc[0]}, {kvacc[1]}")
    k(f"v_cvt_pk_bf16_f32 {outp[0][1]}, {kvacc[2]}, {kvacc[3]}")
    k(f"buffer_store_dwordx2 {outp[0]}, {vst}, {kvsrd}, {skt} offen")
    k(f"s_branch {ldone}")
    k.label(lv)
    k(f"s_lshl_b32 {st}, {stt}, 8")
    k(f"v_lshlrev_b32 {t0}, 6, {kg}")
    k(f"v_add_u32 {t0}, {st}, {t0}")
    for r in range(4): k(f"ds_read_b64 {RC[r][0:2]}, {t0} offset:{ROWC + 16*r}")
    k("s_waitcnt lgkmcnt(0)")
    for r in range(4):
        k(f"v_fma_f32 {kvacc[r]}, {cskv[0]}, {RC[r][0]}, {kvacc[r]}")
        k(f"v_mul_f32 {t1}, {fbits(1.0 / C0)}, {RC[r][1]}")
        k(f"v_mul_f32 {kvacc[r]}, {kvacc[r]}, {t1}")
    k(f"s_and_b32 {st}, {stt}, 1"); k(f"s_lshl_b32 {st}, {st}, 9"); k(f"s_add_u32 {skt}, {skt}, {st}")
    k(f"v_and_b32 {t0}, 1, {kg}"); k(f"v_lshl_add_u32 {t1}, {t0}, 8, {r16x16}")
    k(f"v_lshrrev_b32 {t0}, 1, {kg}"); k(f"v_lshl_add_u32 {t1}, {t0}, 3, {t1}")
    k(f"v_cvt_pk_bf16_f32 {outp[0][0]}, {kvacc[0]}, {kvacc[1]}")
    k(f"v_cvt_pk_bf16_f32 {outp[0][1]}, {kvacc[2]}, {kvacc[3]}")
    k(f"buffer_store_dwordx2 {outp[0]}, {t1}, {kvsrd}, {skt} offen offset:1024")
    k.label(ldone)
    if stamps:
        k("s_waitcnt vmcnt(0)")
        k("s_barrier")
        stp.stamp(1)
        stp.flush(ws, t0, t1, r=xsrd)
    k.label(lend)
    k("s_endpgm")
    for (ls, lb, u, fb, do_read) in side:
        k.label(ls)
        lvv = k.newlabel("sv"); lj = k.newlabel("sj")
        k(f"s_cmp_eq_u32 {srole}, 2")
        k(f"s_cbranch_scc1 {lvv}")
        k(f"{MF16} {kvacc}, {kvw}, {kvx}, {kvacc}")
        k(f"{MF16} {cskv}, {kvw}, {ones}, {cskv}")
        k(f"s_branch {lj}")
        k.label(lvv)
        k(f"{MF16} {kvacc}, {kvx}, {kvw}, {kvacc}")
        k(f"{MF16} {cskv}, {ones}, {kvw}, {cskv}")
        k.label(lj)
        k(f"{MF16} {cs[2]}, {fW[fb][2]}, {ones}, {cs[2]}")
        k(f"{MF16} {cs[3]}, {fW[fb][3]}, {ones}, {cs[3]}")
        if do_read: kv_reads((u + 1) % 4, u + 1)
        k(f"s_branch {lb}")
    return k

if __name__ == "__main__":
    import sys
    for a in sys.argv[1:] or ["0"]:
        var, mm = (a.split(":") + ["8x4"])[:2]
        k = p1_kernel("p1_kernel", stamps=4, var=int(var), mapmode=mm)
        errs = check_hazards(k.lines, k.name)
        t = module_text("; p1 test\n", [k], [(k.name, 256, 512, P1_LDS)])
        open(f"t_p1_{var}_{mm}.s", "w").write(t)
        print("vgprs", k.vhigh, "sgprs", k.shigh, "hazards", len(errs), "lds", P1_LDS)
```

```python
from asm import *
import layout as L
from p1 import emit_map, fbits
from attn import emit_attn_fallback
MF = "v_mfma_f32_32x32x16_bf16"
WRING = 131072
LDS_ALL = 163840

def attn_loop(k, R, var=0, hook=None):
    Q, C, O, S, P, Kf, Vf, ak, av, vmask, sph = (R[x] for x in "Q C O S P Kf Vf ak av vmask sph".split())
    PRIO = {(0, 0): 3, (3, 0): 2, (6, 0): 1} if var & 2 else {}
    k(f"s_mov_b32 {sph}, 0")
    loop = k.newlabel("aloop")
    k(".p2align 6")
    k.label(loop)
    for t in range(8):
        cur, nxt = t & 1, (t & 1) ^ 1
        kt = t >> 1
        if cur: k("s_waitcnt lgkmcnt(0)")
        kb = (kt & 1) if cur == 0 else ((kt + 1) & 1)
        k(f"{MF} {S[nxt]}, {Kf[kb]}, {Q[nxt]}, {C[nxt]}")
        vb = ((kt - 1) & 1) if cur == 0 else (kt & 1)
        for i in range(16):
            if (t, i) in PRIO: k(f"s_setprio {PRIO[(t, i)]}")
            k(f"v_exp_f32 {S[cur][i]}, {S[cur][i]}")
            if i == 1 and not cur:
                k(f"ds_read_b128 {Kf[(kt+1)&1]}, {ak} offset:{(kt+1)*2048 if kt < 3 else 16384}")
                k(f"s_mov_b64 exec, {vmask}")
                k(f"ds_read_b128 {Vf[kt&1][0:4]}, {av} offset:{kt*2048}")
                k(f"ds_read_b128 {Vf[kt&1][4:8]}, {av} offset:{kt*2048+512}")
                k("s_mov_b64 exec, -1")
            if i == 4: k(f"{MF} {O[nxt]}, {Vf[vb][0:4]}, {P[nxt][0:4]}, {O[nxt]}")
            if i == 10: k(f"{MF} {O[nxt]}, {Vf[vb][4:8]}, {P[nxt][4:8]}, {O[nxt]}")
            if i % 2 == 0 and i >= 2:
                j = (i - 2) // 2
                k(f"v_cvt_pk_bf16_f32 {P[cur][j]}, {S[cur][2*j]}, {S[cur][2*j+1]}")
        if t == 7:
            k(f"v_add_u32 {ak}, 16384, {ak}")
            k(f"v_cvt_pk_bf16_f32 {P[cur][7]}, {S[cur][14]}, {S[cur][15]}")
            k(f"v_add_u32 {av}, 16384, {av}")
            k(f"s_add_u32 {sph}, {sph}, 1")
            if hook: hook(loop)
            k(f"s_cmp_lt_u32 {sph}, 8")
            k(f"s_cbranch_scc1 {loop}")
        else:
            k.nop(1)
            k(f"v_cvt_pk_bf16_f32 {P[cur][7]}, {S[cur][14]}, {S[cur][15]}")
    k.nop(1)
    k(f"{MF} {O[1]}, {Vf[1][0:4]}, {P[1][0:4]}, {O[1]}")
    k(f"{MF} {O[1]}, {Vf[1][4:8]}, {P[1][4:8]}, {O[1]}")

def p2b_kernel(name, stamps=0, kidx=1, mapmode="8x4", var=0):
    k = Kernel(name, 256, 768, LDS_ALL, nvgpr=168)
    lend = k.newlabel("end")
    k("s_cmp_ge_u32 s2, 256")
    k(f"s_cbranch_scc1 {lend}")
    ws = k.s(2); pd = k.s(2)
    k(f"s_load_dwordx2 {ws}, s[0:1], 88")
    k(f"s_load_dwordx2 {pd}, s[0:1], 64")
    stp = Stamper(k, kidx, stamps)
    stp.stamp(0)
    lane = k.v(); tmp = k.v(); tmp2 = k.v(); l16 = k.v()
    sw = k.s(); srb = k.s(); scg = k.s(); st = k.s(); st2 = k.s()
    k(f"v_lshrrev_b32 {tmp}, 6, v0")
    k(f"v_and_b32 {lane}, 63, v0")
    k(f"v_readfirstlane_b32 {sw}, {tmp}")
    k(f"v_lshlrev_b32 {l16}, 4, {lane}")
    emit_map(k, srb, scg, st, mapmode)
    k("s_waitcnt lgkmcnt(0)")
    qsrd = k.srd(ws, 0x200000, L.QF)
    kvsrd = k.srd(ws, 0x20000, L.KVF)
    hsrd = k.srd(ws, 64 * 112 * 1024, L.HF)
    dsrd = k.srd(pd, 1792 * 1024)
    osrd = k.srd(ws, 0x200000, L.OF)
    gsrd = k.srd(ws, 0x200000, L.GF)
    lsvc = k.newlabel("svc")
    k(f"s_cmp_ge_u32 {sw}, 8")
    k(f"s_cbranch_scc1 {lsvc}")
    m0_ = k.mark()
    srt = k.s(); skh = k.s(); sq = k.s()
    k(f"s_lshl_b32 {srt}, {srb}, 2"); k(f"s_and_b32 {st}, {sw}, 3"); k(f"s_add_u32 {srt}, {srt}, {st}")
    k(f"s_lshr_b32 {skh}, {sw}, 2")
    k(f"s_lshl_b32 {sq}, {srt}, 4"); k(f"s_add_u32 {sq}, {sq}, {scg}"); k(f"s_lshl_b32 {sq}, {sq}, 11")
    Q = [k.v(4), k.v(4)]; C = [k.v(16), k.v(16)]; O = [k.v(16), k.v(16)]; S = [k.v(16), k.v(16)]; P = [k.v(8), k.v(8)]
    Kf = [k.v(4), k.v(4)]; Vf = [k.v(8), k.v(8)]
    k(f"buffer_load_dwordx4 {Q[0]}, {l16}, {qsrd}, {sq} offen")
    k(f"buffer_load_dwordx4 {Q[1]}, {l16}, {qsrd}, {sq} offen offset:1024")
    k(f"s_lshl_b32 {st}, {sw}, 14")
    for j in range(4):
        k(f"s_mov_b32 m0, {st}"); k.nop(1)
        for i in range(4): k(f"buffer_load_dwordx4 {l16}, {kvsrd}, {st} offen offset:{i*1024} lds")
        k(f"s_add_u32 {st}, {st}, 4096")
    ak = k.v(); av = k.v(); gv = k.v()
    k(f"s_lshl_b32 {st}, {skh}, 13")
    k(f"v_add_u32 {ak}, {st}, {l16}")
    k(f"v_and_b32 {tmp}, 15, {lane}"); k(f"v_lshlrev_b32 {tmp}, 4, {tmp}")
    k(f"v_lshrrev_b32 {tmp2}, 5, {lane}"); k(f"v_lshlrev_b32 {tmp2}, 8, {tmp2}")
    k(f"v_add_u32 {gv}, {tmp}, {tmp2}")
    k(f"v_add_u32 {gv}, 1024, {gv}")
    k(f"v_add_u32 {av}, {st}, {gv}")
    vmask = k.s(2); sph = k.s()
    k(f"s_mov_b32 {vmask[0]}, 0x0000ffff")
    k(f"s_mov_b32 {vmask[1]}, 0x0000ffff")
    k(f"v_mov_b32 {tmp2}, 0x3f803f80")
    k(f"v_and_b32 {tmp}, 27, {lane}")
    k(f"v_cmp_eq_u32 vcc, 16, {tmp}")
    k.nop(2)
    k(f"v_cndmask_b32 {tmp2}, 0, {tmp2}, vcc")
    for b in range(2):
        for i in range(8):
            k(f"v_mov_b32 {Vf[b][i]}, {tmp2}")
            k(f"v_mov_b32 {P[b][i]}, 0")
    for i in range(16): k(f"v_mov_b32 {O[0][i]}, 0"); k(f"v_mov_b32 {O[1][i]}, 0")
    k("s_waitcnt vmcnt(0)")
    k("s_barrier")
    k(f"ds_read_b128 {Kf[1]}, {l16}")
    k(f"ds_read_b128 {Kf[0]}, {ak}")
    k("s_waitcnt lgkmcnt(1)")
    k(f"{MF} {S[0]}, {Kf[1]}, {Q[0]}, 0")
    k(f"{MF} {S[1]}, {Kf[1]}, {Q[1]}, 0")
    k.nop(12)
    for h in range(2):
        k(f"v_max3_f32 {tmp}, {S[h][0]}, {S[h][1]}, {S[h][2]}")
        for i in range(3, 15, 2):
            k(f"v_max3_f32 {tmp}, {S[h][i]}, {S[h][i+1]}, {tmp}")
        k(f"v_max_f32 {tmp}, {S[h][15]}, {tmp}")
        k(f"v_mov_b32 {tmp2}, {tmp}")
        k.nop(2)
        k(f"v_permlane32_swap_b32 {tmp}, {tmp2}")
        k.nop(2)
        k(f"v_max_f32 {tmp}, {tmp}, {tmp2}")
        for i in range(16): k(f"v_sub_f32 {C[h][i]}, 0, {tmp}")
    k("s_waitcnt lgkmcnt(0)")
    k.nop(1)
    k(f"{MF} {S[0]}, {Kf[0]}, {Q[0]}, {C[0]}")
    k.nop(10)
    stp.stamp(2); stp.stamp(4, True)
    attn_loop(k, dict(Q=Q, C=C, O=O, S=S, P=P, Kf=Kf, Vf=Vf, ak=ak, av=av, vmask=vmask, sph=sph), var)
    k(f"s_lshl_b32 {st}, {skh}, 10"); k(f"s_add_u32 {sq}, {sq}, {st}")
    k("s_waitcnt lgkmcnt(0)")
    k("s_barrier")
    stp.stamp(3); stp.stamp(5, True)
    xa = k.v()
    k(f"s_and_b32 {st}, {sw}, 3"); k(f"s_mul_i32 {st}, {st}, 6144")
    k(f"v_add_u32 {xa}, {st}, {l16}")
    k.nop(8)
    lk1 = k.newlabel("kh1"); lj = k.newlabel("khj")
    k(f"s_cmp_eq_u32 {skh}, 1")
    k(f"s_cbranch_scc1 {lk1}")
    for j in range(3): k(f"ds_write_b128 {xa}, {O[1][4*j:4*j+4]} offset:{3072 + 1024*j}")
    k(f"s_branch {lj}")
    k.label(lk1)
    for j in range(3): k(f"ds_write_b128 {xa}, {O[0][4*j:4*j+4]} offset:{1024*j}")
    for i in range(9): k(f"v_mov_b32 {O[0][i]}, {O[1][i]}")
    for i in range(4): k(f"v_mov_b32 {Q[0][i]}, {Q[1][i]}")
    k(f"v_add_u32 {xa}, 3072, {xa}")
    k.label(lj)
    k("s_waitcnt lgkmcnt(0)")
    k("s_barrier")
    Om = O[0]
    for j in range(3): k(f"ds_read_b128 {O[1][4*j:4*j+4]}, {xa} offset:{1024*j}")
    k("s_waitcnt lgkmcnt(0)")
    for i in range(9): k(f"v_add_f32 {Om[i]}, {Om[i]}, {O[1][i]}")
    k(f"v_max3_f32 {tmp}, |{Om[0]}|, |{Om[1]}|, |{Om[2]}|")
    k(f"v_max3_f32 {tmp}, |{Om[3]}|, |{Om[4]}|, {tmp}")
    k(f"v_max3_f32 {tmp}, |{Om[5]}|, |{Om[6]}|, {tmp}")
    k(f"v_max_f32 {tmp}, |{Om[7]}|, {tmp}")
    sc1 = k.s(2); sct = k.s()
    k(f"v_mov_b32 {tmp2}, 0x7f800000")
    k(f"v_cmp_nlt_f32 vcc, {tmp}, {tmp2}")
    k(f"v_mov_b32 {tmp2}, 0x5f800000")
    k(f"v_cmp_nle_f32 {sc1}, {Om[8]}, {tmp2}")
    k.nop(4)
    k(f"s_or_b64 vcc, vcc, {sc1}")
    fb = k.newlabel("fb"); fin = k.newlabel("fin")
    k(f"s_cbranch_scc1 {fb}")
    k.label(fin)
    k(f"v_rcp_f32 {tmp}, {Om[8]}")
    k.nop(1)
    for i in range(8): k(f"v_mul_f32 {Om[i]}, {Om[i]}, {tmp}")
    for i in range(4): k(f"v_cvt_pk_bf16_f32 {P[0][i]}, {Om[2*i]}, {Om[2*i+1]}")
    k(f"buffer_store_dwordx4 {P[0][0:4]}, {l16}, {osrd}, {sq} offen")
    if stamps:
        k("s_waitcnt vmcnt(0)")
        k("s_barrier")
        stp.stamp(1)
        stp.flush(ws, tmp, tmp2)
    k.label(lend)
    k("s_endpgm")
    k.label(fb)
    R = dict(Q=Q[0], C=C[0], O=Om, S=S, P=P, Kf=Kf, Vf=Vf, gk=l16, gv=gv, tmp=tmp, tmp2=tmp2, sct=sct, vmask=vmask)
    emit_attn_fallback(k, R, kvsrd, lane, fin)
    k.release(m0_)
    k.label(lsvc)
    if var & 4: k("s_setprio 3")
    sqi = k.s()
    k(f"s_sub_u32 {sqi}, {sw}, 8")
    srt0 = k.s(); sho = k.s(); sho1 = k.s(); sdo = k.s(); sdo1 = k.s(); sring = k.s()
    k(f"s_and_b32 {st}, {scg}, 1"); k(f"s_lshl_b32 {st}, {st}, 1"); k(f"s_lshl_b32 {srt0}, {srb}, 2"); k(f"s_add_u32 {srt0}, {srt0}, {st}")
    k(f"s_mul_i32 {sho}, {srt0}, 112"); k(f"s_mul_i32 {st}, {sqi}, 28"); k(f"s_add_u32 {sho}, {sho}, {st}"); k(f"s_lshl_b32 {sho}, {sho}, 10")
    k(f"s_add_u32 {sho1}, {sho}, {112 * 1024}")
    k(f"s_lshl_b32 {sdo}, {st}, 14"); k(f"s_lshr_b32 {st}, {scg}, 1"); k(f"s_lshl_b32 {st}, {st}, 7"); k(f"s_add_u32 {sdo}, {sdo}, {st}")
    k(f"s_add_u32 {sdo1}, {sdo}, {8192 - 1024}")
    k(f"s_lshl_b32 {sring}, {sqi}, 13"); k(f"s_add_u32 {sring}, {sring}, {WRING}")
    vW = k.v(); aw = [k.v(), k.v()]
    k(f"v_lshrrev_b32 {tmp}, 3, {lane}"); k(f"v_lshlrev_b32 {vW}, 10, {tmp}")
    k(f"v_bfe_u32 {tmp}, {lane}, 4, 1"); k(f"v_lshlrev_b32 {tmp}, 2, {tmp}")
    k(f"v_and_b32 {tmp2}, 7, {lane}"); k(f"v_xor_b32 {tmp}, {tmp}, {tmp2}")
    k(f"v_lshl_add_u32 {vW}, {tmp}, 4, {vW}")
    k(f"v_bfe_u32 {tmp}, {lane}, 2, 2"); k(f"v_lshlrev_b32 {aw[0]}, 7, {tmp}")
    k(f"v_lshrrev_b32 {tmp2}, 5, {lane}"); k(f"v_lshl_add_u32 {aw[0]}, {tmp2}, 9, {aw[0]}")
    k(f"v_bfe_u32 {tmp}, {lane}, 3, 1"); k(f"v_lshl_add_u32 {aw[0]}, {tmp}, 6, {aw[0]}")
    k(f"v_bfe_u32 {tmp}, {lane}, 4, 1"); k(f"v_lshl_add_u32 {aw[0]}, {tmp}, 5, {aw[0]}")
    k(f"v_and_b32 {tmp}, 3, {lane}"); k(f"v_lshl_add_u32 {aw[0]}, {tmp}, 3, {aw[0]}")
    k(f"v_add_u32 {aw[0]}, {sring}, {aw[0]}")
    k(f"v_xor_b32 {aw[1]}, 64, {aw[0]}")
    DA = [[k.v(16) for ct in range(2)] for rt in range(2)]
    DEP = 4
    Hf = [[k.v(4), k.v(4)] for _ in range(DEP)]
    Wf = [k.v(4), k.v(4)]
    def issue(slot):
        k(f"s_add_u32 m0, {sring}, {slot * 2048}")
        k(f"buffer_load_dwordx4 {Hf[slot][0]}, {l16}, {hsrd}, {sho} offen offset:{slot*1024}")
        k(f"buffer_load_dwordx4 {vW}, {dsrd}, {sdo} offen lds")
        k(f"buffer_load_dwordx4 {vW}, {dsrd}, {sdo1} offen offset:1024 lds")
        k(f"buffer_load_dwordx4 {Hf[slot][1]}, {l16}, {hsrd}, {sho1} offen offset:{slot*1024}")
        k(f"s_add_u32 {sdo}, {sdo}, 16384"); k(f"s_add_u32 {sdo1}, {sdo1}, 16384")
        if slot == DEP - 1:
            k(f"s_add_u32 {sho}, {sho}, {DEP*1024}"); k(f"s_add_u32 {sho1}, {sho1}, {DEP*1024}")
    for rt in range(2):
        for ct in range(2):
            for i in range(16): k(f"v_mov_b32 {DA[rt][ct][i]}, 0")
    k("s_barrier")
    if not var & 1:
        for s_ in range(DEP): issue(s_)
        sit = k.s()
        k(f"s_mov_b32 {sit}, 0")
        dl = k.newlabel("dloop")
        k.label(dl)
        for s_ in range(DEP):
            k(f"s_waitcnt vmcnt({4 * (DEP - 1)})")
            for ct in range(2):
                k(f"ds_read_b64_tr_b16 {Wf[ct][0:2]}, {aw[ct]} offset:{s_*2048}")
                k(f"ds_read_b64_tr_b16 {Wf[ct][2:4]}, {aw[ct]} offset:{s_*2048+1024}")
            k("s_waitcnt lgkmcnt(0)")
            for rt in range(2):
                for ct in range(2):
                    if not var & 16: k(f"{MF} {DA[rt][ct]}, {Wf[ct]}, {Hf[s_][rt]}, {DA[rt][ct]}")
                    else: k("s_sleep 1")
                    if var & 8: k("s_sleep 1")
            if not var & 32: issue(s_)
        k(f"s_add_u32 {sit}, {sit}, 1")
        k(f"s_cmp_lt_u32 {sit}, {28 // DEP}")
        k(f"s_cbranch_scc1 {dl}")
    if stamps >= 7: stp.stamp(6)
    k("s_waitcnt vmcnt(0)")
    k("s_barrier")
    xa = k.v()
    k(f"s_lshl_b32 {st}, {sqi}, 12"); k(f"s_add_u32 {st}, {st}, 32768")
    k(f"v_add_u32 {xa}, {st}, {l16}")
    for d in range(4):
        for j in range(4): k(f"ds_write_b128 {xa}, {DA[d & 1][d >> 1][4*j:4*j+4]} offset:{d*16384 + j*1024}")
    k("s_waitcnt lgkmcnt(0)")
    k("s_barrier")
    k(f"s_lshl_b32 {st}, {sqi}, 14"); k(f"s_add_u32 {st}, {st}, 32768")
    k(f"v_add_u32 {xa}, {st}, {l16}")
    for q_ in range(4):
        for j in range(4): k(f"ds_read_b128 {DA[q_ & 1][q_ >> 1][4*j:4*j+4]}, {xa} offset:{q_*4096 + j*1024}")
        if q_ == 2: k("s_waitcnt lgkmcnt(4)")
    k("s_waitcnt lgkmcnt(0)")
    F_ = DA[0][0]; T = DA[1][0]
    for i in range(16): k(f"v_add_f32 {F_[i]}, {F_[i]}, {DA[1][0][i]}")
    for i in range(16): k(f"v_add_f32 {DA[0][1][i]}, {DA[0][1][i]}, {DA[1][1][i]}")
    for i in range(16): k(f"v_add_f32 {F_[i]}, {F_[i]}, {DA[0][1][i]}")
    for i in range(16): k(f"v_mul_f32 {T[i]}, {fbits(-1.4426950408889634)}, {F_[i]}")
    for i in range(16): k(f"v_exp_f32 {T[i]}, {T[i]}")
    for i in range(16): k(f"v_add_f32 {T[i]}, 1.0, {T[i]}")
    for i in range(16): k(f"v_rcp_f32 {T[i]}, {T[i]}")
    for i in range(16): k(f"v_mul_f32 {F_[i]}, {F_[i]}, {T[i]}")
    for i in range(8): k(f"v_cvt_pk_bf16_f32 {T[i]}, {F_[2*i]}, {F_[2*i+1]}")
    k(f"s_and_b32 {st}, {sqi}, 1"); k(f"s_add_u32 {st}, {st}, {srt0}"); k(f"s_lshl_b32 {st}, {st}, 5")
    k(f"s_lshr_b32 {st2}, {scg}, 1"); k(f"s_lshl_b32 {st2}, {st2}, 2"); k(f"s_add_u32 {st}, {st}, {st2}")
    k(f"s_and_b32 {st2}, {sqi}, 2"); k(f"s_add_u32 {st}, {st}, {st2}"); k(f"s_lshl_b32 {st}, {st}, 10")
    k(f"buffer_store_dwordx4 {T[0:4]}, {l16}, {gsrd}, {st} offen")
    k(f"buffer_store_dwordx4 {T[4:8]}, {l16}, {gsrd}, {st} offen offset:1024")
    if stamps:
        k("s_waitcnt vmcnt(0)")
        k("s_barrier")
        if stamps >= 7:
            r = k.srd(ws, 8 * 256 * 256, L.STAMP, r=qsrd)
            k("s_waitcnt lgkmcnt(0)")
            k(f"s_lshl_b32 {st}, s2, 8"); k(f"s_add_u32 {st}, {st}, {kidx * 65536}")
            k(f"v_mov_b32 {tmp}, {stp.regs[6][0]}"); k(f"v_mov_b32 {tmp2}, 0")
            k(f"s_cmp_eq_u32 {sqi}, 0")
            l_ = k.newlabel("x"); k(f"s_cbranch_scc0 {l_}")
            k(f"buffer_store_dword {tmp}, {tmp2}, {r}, {st} offen offset:28")
            k.label(l_)
    k("s_endpgm")
    return k

if __name__ == "__main__":
    import sys
    for a in sys.argv[1:] or ["0"]:
        var, mm = (a.split(":") + ["8x4"])[:2]
        k = p2b_kernel("p2_kernel", stamps=7, var=int(var), kidx=0, mapmode=mm)
        errs = check_hazards(k.lines, k.name)
        t = module_text("; p2b test\n", [k], [(k.name, 256, 768, LDS_ALL)])
        open(f"t_p2b_{var}_{mm}.s", "w").write(t)
        print("vgprs", k.vhigh, "sgprs", k.shigh, "hazards", len(errs))
```

```python
from asm import *
import layout as L
from p1 import fbits, C0, C1
from attn import emit_attn_fallback
from p2b import attn_loop
MF = "v_mfma_f32_32x32x16_bf16"
MF16 = "v_mfma_f32_16x16x32_bf16"
LDS_ALL = 163840
WR = 49152
XR = 114688
ROWC = 147456
CSO = ROWC + 2048
QLDS = ROWC + 4096
TASKX = 0
TASKW = 16384
TASKR = 32768
DRING = 131072
SPIN_MAX = 1 << 15

class St:
    def __init__(self, k, n): self.k = k; self.regs = [k.s(2) for _ in range(n)]
    def __call__(self, i, cyc=False):
        if i < len(self.regs): self.k(f"{'s_memtime' if cyc else 's_memrealtime'} {self.regs[i]}")
    def flush(self, wsrd_big, sw, wave, base, st, t0, t1):
        if not self.regs: return
        k = self.k
        l = k.newlabel("nost")
        k("s_waitcnt lgkmcnt(0)")
        k(f"s_cmp_lg_u32 {sw}, {wave}"); k(f"s_cbranch_scc1 {l}")
        k(f"s_lshl_b32 {st}, s2, 8"); k(f"s_add_u32 {st}, {st}, {L.STAMP}")
        k(f"v_mov_b32 {t1}, 0")
        for i, r in enumerate(self.regs):
            k(f"v_mov_b32 {t0}, {r[0]}")
            k(f"buffer_store_dword {t0}, {t1}, {wsrd_big}, {st} offen offset:{4*(base+i)}")
            k.nop(1)
        k.label(l)

def mega_kernel(name, stamps=0, stop=0, var=0):
    k = Kernel(name, 256, 768, LDS_ALL, nvgpr=168)
    lend = k.newlabel("end")
    k("s_cmp_ge_u32 s2, 256")
    k(f"s_cbranch_scc1 {lend}")
    pa = k.s(8); pb = k.s(8); pwo = k.s(2); ws = k.s(2)
    px, pq, pk_, pv = pa[0:2], pa[2:4], pa[4:6], pa[6:8]
    pg, pu, pd, pout = pb[0:2], pb[2:4], pb[4:6], pb[6:8]
    k(f"s_load_dwordx8 {pa}, s[0:1], 0")
    k(f"s_load_dwordx8 {pb}, s[0:1], 48")
    k(f"s_load_dwordx2 {ws}, s[0:1], 88")
    k(f"s_load_dwordx2 {pwo}, s[0:1], 32")
    stp = St(k, stamps)
    stp(0)
    lane = k.v(); l16 = k.v(); t0 = k.v(); t1 = k.v(); t2 = k.v(); t3 = k.v(); r16 = k.v(); kg = k.v()
    sw = k.s(); srb = k.s(); sj = k.s(); st = k.s(); st2 = k.s(); tag = k.s(2)
    k(f"v_lshrrev_b32 {t0}, 6, v0")
    k(f"v_and_b32 {lane}, 63, v0")
    k(f"v_readfirstlane_b32 {sw}, {t0}")
    k(f"v_lshlrev_b32 {l16}, 4, {lane}")
    k(f"v_and_b32 {r16}, 15, {lane}")
    k(f"v_lshrrev_b32 {kg}, 4, {lane}")
    k(f"s_and_b32 {srb}, s2, 3"); k(f"s_lshl_b32 {srb}, {srb}, 2")
    k(f"s_bfe_u32 {st}, s2, 0x20003"); k(f"s_add_u32 {srb}, {srb}, {st}")
    k(f"s_bfe_u32 {sj}, s2, 0x10002"); k(f"s_lshl_b32 {sj}, {sj}, 3")
    k(f"s_lshr_b32 {st}, s2, 5"); k(f"s_add_u32 {sj}, {sj}, {st}")
    sb = k.s()
    k(f"s_and_b32 {sb}, {sw}, 3")
    aW = [k.v(), k.v()]
    k(f"v_lshrrev_b32 {t0}, 2, {r16}")
    k(f"v_lshl_add_u32 {t1}, {kg}, 3, {t0}")
    k(f"v_and_b32 {t2}, 1, {kg}"); k(f"v_lshl_add_u32 {t2}, {t2}, 2, {t0}")
    k(f"s_lshl_b32 {st}, {sb}, 1")
    k(f"v_xor_b32 {t2}, {st}, {t2}")
    k(f"v_lshlrev_b32 {aW[0]}, 8, {t1}")
    k(f"v_lshl_add_u32 {aW[0]}, {t2}, 5, {aW[0]}")
    k(f"v_and_b32 {t2}, 3, {lane}"); k(f"v_lshl_add_u32 {aW[0]}, {t2}, 3, {aW[0]}")
    k(f"v_add_u32 {aW[0]}, {WR}, {aW[0]}")
    k(f"v_xor_b32 {aW[1]}, 32, {aW[0]}")
    k("s_waitcnt lgkmcnt(0)")
    wsrd = k.srd(ws, 0x2000000)
    xsrd = k.srd(px, 2048 * 1024)
    nb = k.s(2)
    k(f"s_add_u32 {nb[0]}, {ws[0]}, {L.NONCE}"); k(f"s_addc_u32 {nb[1]}, {ws[1]}, 0")
    k(f"s_load_dwordx2 {tag}, {nb}, 0")
    lsvc = k.newlabel("svc")
    k(f"s_cmp_ge_u32 {sw}, 8")
    k(f"s_cbranch_scc1 {lsvc}")
    mk0 = k.mark()
    def mktag():
        k("s_waitcnt lgkmcnt(0)")
        k(f"s_mul_i32 {tag[0]}, {tag[0]}, 1664525"); k(f"s_add_u32 {tag[0]}, {tag[0]}, 1013904223")
        k(f"s_mul_i32 {tag[1]}, {tag[1]}, 22695477"); k(f"s_add_u32 {tag[1]}, {tag[1]}, 1")
    sa = k.s(); sstr = k.s(); sstr32 = k.s(); scol = k.s(); sks = k.s(); sWo = k.s(); sxu = k.s(); sXo = k.s(); sXb = k.s()
    sldW = k.s(); sldX = k.s(); sxs = k.s()
    srdG = k.s(4); srdU = k.s(4)
    k(f"s_lshr_b32 {sa}, {sw}, 2")
    k(f"s_mov_b32 {sstr}, 3584"); k(f"s_mov_b32 {srdG[2]}, {512*3584}"); k(f"s_lshl_b32 {scol}, {sj}, 8")
    k(f"s_sub_u32 {st}, {sj}, 14"); k(f"s_lshl_b32 {st}, {st}, 9")
    k(f"s_add_u32 {srdU[0]}, {pq[0]}, 256"); k(f"s_addc_u32 {srdU[1]}, {pq[1]}, 0")
    k(f"s_mov_b32 {srdU[2]}, {512*3584}")
    k(f"s_cmp_ge_u32 {sj}, 14")
    k(f"s_cselect_b64 {srdG[0:2]}, {pq}, {pg}")
    k(f"s_cselect_b64 {srdU[0:2]}, {srdU[0:2]}, {pu}")
    k(f"s_cselect_b32 {sstr}, 1024, {sstr}")
    k(f"s_cselect_b32 {srdG[2]}, {512*1024}, {srdG[2]}")
    k(f"s_cselect_b32 {srdU[2]}, {512*1024-256}, {srdU[2]}")
    k(f"s_cselect_b32 {scol}, {st}, {scol}")
    k(f"s_and_b32 {srdG[1]}, {srdG[1]}, 0xffff"); k(f"s_and_b32 {srdU[1]}, {srdU[1]}, 0xffff")
    k(f"s_mov_b32 {srdG[3]}, 0x20000"); k(f"s_mov_b32 {srdU[3]}, 0x20000")
    k(f"s_lshl_b32 {sstr32}, {sstr}, 5")
    k(f"s_and_b32 {sks}, {srb}, 3"); k(f"s_lshl_b32 {sks}, {sks}, 2"); k(f"s_lshr_b32 {st}, {srb}, 2"); k(f"s_add_u32 {sks}, {sks}, {st}")
    k(f"s_lshr_b32 {sxu}, {sks}, 1")
    sodd = k.s()
    k(f"s_and_b32 {sodd}, {sks}, 1")
    vW = k.v(); vX = [k.v(), k.v()]
    k(f"s_lshl_b32 {st}, {sw}, 2"); k(f"v_add_u32 {t0}, {st}, {kg}")
    k(f"v_mul_lo_u32 {vW}, {t0}, {sstr}")
    k(f"s_and_b32 {st}, {sw}, 2"); k(f"s_lshl_b32 {st}, {st}, 2")
    k(f"v_lshlrev_b32 {t1}, 1, {kg}"); k(f"v_add_u32 {t1}, {st}, {t1}")
    k(f"v_xor_b32 {t1}, {t1}, {r16}")
    k(f"v_lshl_add_u32 {vW}, {t1}, 4, {vW}")
    k(f"v_lshrrev_b32 {t0}, 3, {lane}"); k(f"v_lshlrev_b32 {vX[0]}, 10, {t0}")
    k(f"v_and_b32 {t1}, 7, {lane}"); k(f"v_xor_b32 {t1}, {t1}, {kg}")
    k(f"v_lshl_add_u32 {vX[0]}, {t1}, 4, {vX[0]}")
    k(f"v_xor_b32 {vX[1]}, 64, {vX[0]}"); k(f"v_add_u32 {vX[1]}, 8192, {vX[1]}")
    k(f"s_lshl_b32 {sXb}, {srb}, 17"); k(f"s_lshl_b32 {st}, {sw}, 14"); k(f"s_add_u32 {sXb}, {sXb}, {st}")
    k(f"s_lshl_b32 {sldW}, {sw}, 10"); k(f"s_add_u32 {sldW}, {sldW}, {WR}")
    k(f"s_lshl_b32 {sldX}, {sw}, 11"); k(f"s_add_u32 {sldX}, {sldX}, {XR}")
    k(f"s_mov_b32 {sxs}, {sldX}")
    def dma_w(slot, par):
        k(f"s_mul_i32 {sWo}, {sks}, {sstr32}")
        k(f"s_add_u32 m0, {sldW}, {slot*16384}")
        k(f"s_add_u32 {sWo}, {sWo}, {scol}")
        k(f"buffer_load_dwordx4 {vW}, {srdG}, {sWo} offen lds")
        k(f"s_add_u32 m0, {sldW}, {slot*16384 + 8192}")
        k(f"s_xor_b32 {sks}, {sks}, 1")
        k(f"buffer_load_dwordx4 {vW}, {srdU}, {sWo} offen lds")
        if par:
            k(f"s_add_u32 {sks}, {sks}, 2"); k(f"s_and_b32 {sks}, {sks}, 15")
    def dma_x(e):
        if e == 0:
            k(f"s_lshl_b32 {sXo}, {sxu}, 7")
            k(f"s_mov_b32 m0, {sxs}")
            k(f"s_add_u32 {sXo}, {sXo}, {sXb}")
            k(f"buffer_load_dwordx4 {vX[0]}, {xsrd}, {sXo} offen lds")
        else:
            k(f"s_add_u32 m0, {sxs}, 1024")
            k(f"s_add_u32 {sxu}, {sxu}, 1")
            k(f"buffer_load_dwordx4 {vX[1]}, {xsrd}, {sXo} offen lds")
            k(f"s_and_b32 {sxu}, {sxu}, 7")
            k(f"s_add_u32 {sxs}, {sxs}, 16384")
            k(f"s_cmp_ge_u32 {sxs}, {XR + 3*16384}")
            k(f"s_cselect_b32 {sxs}, {sldX}, {sxs}")
    dma_w(0, 0); dma_x(0); dma_x(1)
    dma_w(1, 1); dma_x(0)
    dma_w(2, 0); dma_x(1)
    dma_w(3, 1); dma_x(0)
    aX = [k.v(), k.v()]
    k(f"v_lshrrev_b32 {t0}, 1, {r16}"); k(f"v_xor_b32 {t0}, {t0}, {kg}")
    k(f"v_lshlrev_b32 {aX[0]}, 7, {r16}"); k(f"v_lshl_add_u32 {aX[0]}, {t0}, 4, {aX[0]}")
    k(f"s_lshl_b32 {st}, {sodd}, 6"); k(f"v_xor_b32 {aX[0]}, {st}, {aX[0]}")
    k(f"v_xor_b32 {aX[1]}, 64, {aX[0]}")
    k(f"s_lshl_b32 {st}, {sa}, 13"); k(f"s_add_u32 {st}, {st}, {XR}")
    k(f"v_add_u32 {aX[0]}, {st}, {aX[0]}"); k(f"v_add_u32 {aX[1]}, {st}, {aX[1]}")
    mkA = k.mark()
    acc = [[k.v(4) for T in range(4)] for i in range(4)]
    fX = [[k.v(4) for i in range(4)] for _ in range(2)]
    fW = [[k.v(4) for T in range(4)] for _ in range(2)]
    for i in range(4):
        for T in range(4):
            for r in range(4): k(f"v_mov_b32 {acc[i][T][r]}, 0")
    sxr = k.s(); sdl = k.s()
    k(f"s_mov_b32 {sxr}, 0")
    def reads(slot, fb, par):
        R = [f"ds_read_b128 {fX[fb][i]}, {aX[par]} offset:{i*2048}" for i in range(4)]
        W = []
        for T in range(4):
            o = slot * 16384 + (T & 1) * 8192
            W.append(f"ds_read_b64_tr_b16 {fW[fb][T][0:2]}, {aW[T >> 1]} offset:{o}")
            W.append(f"ds_read_b64_tr_b16 {fW[fb][T][2:4]}, {aW[T >> 1]} offset:{o+1024}")
        return [R[0], W[0], W[1], R[1], W[2], W[3], R[2], W[4], W[5], R[3], W[6], W[7]]
    def xadv(par):
        if par == 0:
            k(f"s_add_u32 {sxr}, {sxr}, 1"); k(f"s_cmp_eq_u32 {sxr}, 3")
            k(f"s_cselect_b32 {sxr}, 0, {sxr}"); k(f"s_mov_b32 {sdl}, 16384")
            k(f"s_cselect_b32 {sdl}, {(-32768) & 0xffffffff}, {sdl}")
        k(f"v_add_u32 {aX[par]}, {sdl}, {aX[par]}")
    mktag()
    k("s_waitcnt vmcnt(9)")
    k("s_barrier")
    stp(2)
    for r in reads(0, 0, 0): k(r)
    xadv(0)
    sit = k.s()
    def stage(u, vm, do_dma, do_read, lastx=False):
        fb = u & 1
        k(f"s_waitcnt vmcnt({vm}) lgkmcnt(0)" if vm is not None else "s_waitcnt lgkmcnt(0)")
        if do_read: k("s_barrier")
        R = reads((u + 1) % 4, fb ^ 1, fb ^ 1) if do_read else []
        j = 0
        for i in range(4):
            for T in range(4):
                k(f"{MF16} {acc[i][T]}, {fW[fb][T]}, {fX[fb][i]}, {acc[i][T]}")
                if j < len(R): k(R[j])
                if j == 12 and do_read: xadv(fb ^ 1)
                if j == 2 and do_dma: dma_w(u, u & 1)
                if j == 6 and do_dma:
                    if lastx:
                        l_ = k.newlabel("nox")
                        k(f"s_cmp_eq_u32 {sit}, 2"); k(f"s_cbranch_scc1 {l_}")
                        dma_x(0); k.label(l_)
                    else: dma_x((u & 1) ^ 1)
                j += 1
    k(f"s_mov_b32 {sit}, 0")
    loop = k.newlabel("p1loop")
    k(".p2align 6")
    k.label(loop)
    for u in range(4): stage(u, 6, True, True, lastx=(u == 3))
    k(f"s_add_u32 {sit}, {sit}, 1")
    k(f"s_cmp_lt_u32 {sit}, 3")
    k(f"s_cbranch_scc1 {loop}")
    stage(0, 5, False, True); stage(1, 2, False, True); stage(2, 0, False, True); stage(3, None, False, False)
    stp(3)
    k("s_barrier")
    RC = fX[0]; CS = fW[0]
    k(f"s_lshl_b32 {st}, {sa}, 10"); k(f"s_add_u32 {st}, {st}, {ROWC}")
    k(f"v_lshl_add_u32 {t0}, {r16}, 4, {st}")
    for i in range(4): k(f"ds_read_b128 {RC[i]}, {t0} offset:{i*256}")
    k(f"s_lshl_b32 {st}, {sb}, 7"); k(f"s_add_u32 {st}, {st}, {CSO}")
    k(f"v_lshl_add_u32 {t1}, {kg}, 4, {st}")
    for T in range(4): k(f"ds_read_b128 {CS[T]}, {t1} offset:{(T & 1) * 512 + (T >> 1) * 64}")
    vst = k.v()
    k(f"v_lshlrev_b32 {vst}, 4, {r16}"); k(f"v_lshl_add_u32 {vst}, {kg}, 9, {vst}")
    so = k.s(); sflag = k.s()
    tm = [fX[1][j // 2][2*(j&1):2*(j&1)+2] for j in range(8)]
    outp = [fW[1][0], fW[1][1]]
    lqe = k.newlabel("qepi"); lep = k.newlabel("epdone")
    k(f"s_cmp_ge_u32 {sj}, 14")
    k(f"s_cbranch_scc1 {lqe}")
    k(f"s_lshl_b32 {so}, {srb}, 1"); k(f"s_add_u32 {so}, {so}, {sa}"); k(f"s_mul_i32 {so}, {so}, 224")
    k(f"s_lshl_b32 {st}, {sj}, 3"); k(f"s_add_u32 {so}, {so}, {st}"); k(f"s_lshl_b32 {st}, {sb}, 1"); k(f"s_add_u32 {so}, {so}, {st}")
    k(f"s_lshl_b32 {so}, {so}, 10"); k(f"s_add_u32 {so}, {so}, {L.HF}")
    k("s_waitcnt lgkmcnt(0)")
    for i in range(4):
        rcv = RC[i]; o = outp[i & 1]
        for lp in range(2):
            G = acc[i][2*lp]; U = acc[i][2*lp+1]
            for hlf in range(2):
                g = G[2*hlf:2*hlf+2]; u = U[2*hlf:2*hlf+2]
                w_, z_ = tm[4*lp + 2*hlf], tm[4*lp + 2*hlf + 1]
                k(f"v_pk_fma_f32 {g}, {CS[2*lp][2*hlf:2*hlf+2]}, {rcv[0:2]}, {g} op_sel_hi:[1,0,1]")
                k(f"v_pk_fma_f32 {u}, {CS[2*lp+1][2*hlf:2*hlf+2]}, {rcv[0:2]}, {u} op_sel_hi:[1,0,1]")
                k(f"v_pk_mul_f32 {w_}, {g}, {g}")
                k(f"v_pk_fma_f32 {w_}, {w_}, {rcv[2:4]}, {rcv[0:2]} op_sel:[0,0,1] op_sel_hi:[1,0,1]")
                k(f"v_pk_mul_f32 {z_}, {w_}, {g}")
                k(f"v_pk_mul_f32 {u}, {u}, {g}")
                k(f"v_exp_f32 {z_[0]}, {z_[0]}")
                k(f"v_exp_f32 {z_[1]}, {z_[1]}")
        for x_ in range(4):
            z_ = tm[2*x_ + 1]
            k(f"v_pk_fma_f32 {z_}, {z_}, {rcv[2:4]}, {rcv[2:4]} op_sel:[0,1,1] op_sel_hi:[1,1,1]")
            k(f"v_rcp_f32 {z_[0]}, {z_[0]}")
            k(f"v_rcp_f32 {z_[1]}, {z_[1]}")
        for lp in range(2):
            for hlf in range(2):
                u = acc[i][2*lp+1][2*hlf:2*hlf+2]
                k(f"v_pk_mul_f32 {u}, {u}, {tm[4*lp + 2*hlf + 1]}")
        for lp in range(2):
            U = acc[i][2*lp+1]
            for hlf in range(2): k(f"v_cvt_pk_bf16_f32 {o[2*lp+hlf]}, {U[2*hlf]}, {U[2*hlf+1]}")
        k.nop(2)
        k(f"v_permlane32_swap_b32 {o[0]}, {o[2]}")
        k(f"v_permlane32_swap_b32 {o[1]}, {o[3]}")
        k(f"buffer_store_dwordx4 {o}, {vst}, {wsrd}, {so} offen offset:{(i & 1) * 256} sc1")
        if i == 1: k(f"s_add_u32 {so}, {so}, {112*1024}")
    k(f"s_lshl_b32 {sflag}, {srb}, 1"); k(f"s_add_u32 {sflag}, {sflag}, {sa}"); k(f"s_lshl_b32 {sflag}, {sflag}, 4")
    k(f"s_add_u32 {sflag}, {sflag}, {sj}"); k(f"s_lshl_b32 {sflag}, {sflag}, 2"); k(f"s_add_u32 {sflag}, {sflag}, {sb}")
    k(f"s_lshl_b32 {sflag}, {sflag}, 3"); k(f"s_add_u32 {sflag}, {sflag}, {L.FL_H}")
    k(f"s_branch {lep}")
    k.label(lqe)
    k(f"s_lshl_b32 {so}, {srb}, 1"); k(f"s_add_u32 {so}, {so}, {sa}"); k(f"s_lshl_b32 {so}, {so}, 6")
    k(f"s_sub_u32 {st}, {sj}, 14"); k(f"s_lshl_b32 {st}, {st}, 4"); k(f"s_add_u32 {so}, {so}, {st}")
    k(f"s_lshl_b32 {st}, {sb}, 1"); k(f"s_add_u32 {so}, {so}, {st}")
    k(f"s_lshl_b32 {so}, {so}, 10"); k(f"s_add_u32 {so}, {so}, {L.QF}")
    k(f"s_add_u32 {st2}, {so}, 8192")
    k("s_waitcnt lgkmcnt(0)")
    for i in range(4):
        rcv = RC[i]
        k(f"v_mul_f32 {tm[0][0]}, {fbits(L.QSCALE / C0)}, {rcv[1]}")
        for part in range(2):
            o = outp[part]
            for lp in range(2):
                T = 2 * lp + part; A = acc[i][T]
                for hlf in range(2):
                    g = A[2*hlf:2*hlf+2]
                    k(f"v_pk_fma_f32 {g}, {CS[T][2*hlf:2*hlf+2]}, {rcv[0:2]}, {g} op_sel_hi:[1,0,1]")
                    k(f"v_pk_mul_f32 {g}, {g}, {tm[0]} op_sel_hi:[1,0]")
                for hlf in range(2): k(f"v_cvt_pk_bf16_f32 {o[2*lp+hlf]}, {A[2*hlf]}, {A[2*hlf+1]}")
            k.nop(2)
            k(f"v_permlane32_swap_b32 {o[0]}, {o[2]}")
            k(f"v_permlane32_swap_b32 {o[1]}, {o[3]}")
            k(f"buffer_store_dwordx4 {o}, {vst}, {wsrd}, {st2 if part else so} offen offset:{(i & 1) * 256} sc1")
        if i == 1:
            k(f"s_add_u32 {so}, {so}, {32*1024}"); k(f"s_add_u32 {st2}, {st2}, {32*1024}")
    k(f"s_lshl_b32 {sflag}, {srb}, 1"); k(f"s_add_u32 {sflag}, {sflag}, {sj}"); k(f"s_sub_u32 {sflag}, {sflag}, 14")
    k(f"s_lshl_b32 {sflag}, {sflag}, 3"); k(f"s_add_u32 {sflag}, {sflag}, {sw}")
    k(f"s_lshl_b32 {sflag}, {sflag}, 3"); k(f"s_add_u32 {sflag}, {sflag}, {L.FL_Q}")
    def put_flag(off_s, va, vb):
        tp = Reg('v', va.base, 2)
        k(f"v_mov_b32 {tp[0]}, {tag[0]}"); k(f"v_mov_b32 {tp[1]}, {tag[1]}"); k(f"v_mov_b32 {vb}, 0")
        k("s_waitcnt vmcnt(0)")
        k("s_mov_b64 exec, 1")
        k(f"buffer_store_dwordx2 {tp}, {vb}, {wsrd}, {off_s} offen sc1")
        k("s_mov_b64 exec, -1")
    put_flag(sflag, tm[2], t0)
    k.label(lep)
    stp(4)
    k.release(mkA); k.snext = sflag.base + 1
    skh = sa
    Q = [k.v(4), k.v(4)]; C = [k.v(16), k.v(16)]; O = [k.v(16), k.v(16)]; S = [k.v(16), k.v(16)]; P = [k.v(8), k.v(8)]
    Kf = [k.v(4), k.v(4)]; Vf = [k.v(8), k.v(8)]
    ak = aX[0]; av = aX[1]; gv = vW; fl2 = k.v(2)
    k.nop(2)
    k(f"s_lshl_b32 {st}, {skh}, 13")
    k(f"v_add_u32 {ak}, {st}, {l16}")
    k(f"v_lshrrev_b32 {t1}, 5, {lane}"); k(f"v_lshlrev_b32 {t1}, 8, {t1}")
    k(f"v_lshl_add_u32 {gv}, {r16}, 4, {t1}")
    k(f"v_add_u32 {gv}, 1024, {gv}")
    k(f"v_add_u32 {av}, {st}, {gv}")
    vmask = k.s(2); sph = k.s()
    k(f"s_mov_b32 {vmask[0]}, 0x0000ffff"); k(f"s_mov_b32 {vmask[1]}, 0x0000ffff")
    k(f"v_mov_b32 {t1}, 0x3f803f80")
    k(f"v_and_b32 {t0}, 27, {lane}")
    k(f"v_cmp_eq_u32 vcc, 16, {t0}")
    k.nop(2)
    k(f"v_cndmask_b32 {t1}, 0, {t1}, vcc")
    for b in range(2):
        for i in range(8): k(f"v_mov_b32 {Vf[b][i]}, {t1}")
    for i in range(8): k(f"v_mov_b32 {P[1][i]}, 0")
    for i in range(16): k(f"v_mov_b32 {O[0][i]}, 0"); k(f"v_mov_b32 {O[1][i]}, 0")
    k(f"s_lshl_b32 {st}, {sb}, 11"); k(f"s_add_u32 {st}, {st}, {QLDS}")
    k(f"v_add_u32 {t0}, {st}, {l16}")
    k("s_barrier")
    stp(5)
    if stop == 1:
        put_flag(sflag, fl2, t0)
        stp(1); stp.flush(wsrd, sw, 0, 0, st, t0, t1)
        k("s_endpgm")
    k(f"ds_read_b128 {Q[0]}, {t0}")
    k(f"ds_read_b128 {Q[1]}, {t0} offset:1024")
    k(f"ds_read_b128 {Kf[1]}, {l16}")
    k(f"ds_read_b128 {Kf[0]}, {ak}")
    k("s_waitcnt lgkmcnt(0)")
    k("s_barrier")
    k(f"{MF} {S[0]}, {Kf[1]}, {Q[0]}, 0")
    k(f"{MF} {S[1]}, {Kf[1]}, {Q[1]}, 0")
    put_flag(sflag, fl2, t2)
    k.nop(6)
    for h in range(2):
        k(f"v_max3_f32 {t0}, {S[h][0]}, {S[h][1]}, {S[h][2]}")
        for i in range(3, 15, 2):
            k(f"v_max3_f32 {t0}, {S[h][i]}, {S[h][i+1]}, {t0}")
        k(f"v_max_f32 {t0}, {S[h][15]}, {t0}")
        k(f"v_mov_b32 {t1}, {t0}")
        k.nop(2)
        k(f"v_permlane32_swap_b32 {t0}, {t1}")
        k.nop(2)
        k(f"v_max_f32 {t0}, {t0}, {t1}")
        for i in range(16): k(f"v_sub_f32 {C[h][i]}, 0, {t0}")
    k.nop(2)
    k(f"{MF} {S[0]}, {Kf[0]}, {Q[0]}, {C[0]}")
    k.nop(10)
    stp(6)
    attn_loop(k, dict(Q=Q, C=C, O=O, S=S, P=P, Kf=Kf, Vf=Vf, ak=ak, av=av, vmask=vmask, sph=sph), 2)
    k(f"s_lshl_b32 {so}, {srb}, 2"); k(f"s_add_u32 {so}, {so}, {sb}"); k(f"s_lshl_b32 {so}, {so}, 4"); k(f"s_add_u32 {so}, {so}, {sj}")
    k(f"s_lshl_b32 {so}, {so}, 1"); k(f"s_add_u32 {so}, {so}, {skh}"); k(f"s_lshl_b32 {so}, {so}, 10"); k(f"s_add_u32 {so}, {so}, {L.OF}")
    k(f"s_lshl_b32 {sflag}, {srb}, 1"); k(f"s_lshr_b32 {st}, {sb}, 1"); k(f"s_add_u32 {sflag}, {sflag}, {st}"); k(f"s_lshl_b32 {sflag}, {sflag}, 4")
    k(f"s_add_u32 {sflag}, {sflag}, {sj}"); k(f"s_lshl_b32 {sflag}, {sflag}, 1"); k(f"s_add_u32 {sflag}, {sflag}, {skh}")
    k(f"s_lshl_b32 {sflag}, {sflag}, 1"); k(f"s_and_b32 {st}, {sb}, 1"); k(f"s_add_u32 {sflag}, {sflag}, {st}")
    k(f"s_lshl_b32 {sflag}, {sflag}, 3"); k(f"s_add_u32 {sflag}, {sflag}, {L.FL_O}")
    xa = t3
    k(f"s_mul_i32 {st}, {sb}, 6144")
    k(f"v_add_u32 {xa}, {st}, {l16}")
    k("s_waitcnt lgkmcnt(0)")
    k("s_setprio 3")
    k("s_barrier")
    stp(7)
    lk1 = k.newlabel("kh1"); lj = k.newlabel("khj")
    k(f"s_cmp_eq_u32 {skh}, 1")
    k(f"s_cbranch_scc1 {lk1}")
    for j in range(3): k(f"ds_write_b128 {xa}, {O[1][4*j:4*j+4]} offset:{3072 + 1024*j}")
    k(f"s_branch {lj}")
    k.label(lk1)
    for j in range(3): k(f"ds_write_b128 {xa}, {O[0][4*j:4*j+4]} offset:{1024*j}")
    for i in range(9): k(f"v_mov_b32 {O[0][i]}, {O[1][i]}")
    for i in range(4): k(f"v_mov_b32 {Q[0][i]}, {Q[1][i]}")
    k(f"v_add_u32 {xa}, 3072, {xa}")
    k.label(lj)
    k("s_waitcnt lgkmcnt(0)")
    k("s_barrier")
    Om = O[0]
    for j in range(3): k(f"ds_read_b128 {O[1][4*j:4*j+4]}, {xa} offset:{1024*j}")
    k("s_waitcnt lgkmcnt(0)")
    for i in range(9): k(f"v_add_f32 {Om[i]}, {Om[i]}, {O[1][i]}")
    k(f"v_max3_f32 {t0}, |{Om[0]}|, |{Om[1]}|, |{Om[2]}|")
    k(f"v_max3_f32 {t0}, |{Om[3]}|, |{Om[4]}|, {t0}")
    k(f"v_max3_f32 {t0}, |{Om[5]}|, |{Om[6]}|, {t0}")
    k(f"v_max_f32 {t0}, |{Om[7]}|, {t0}")
    sc1 = k.s(2); sct = k.s()
    k(f"v_mov_b32 {t1}, 0x7f800000")
    k(f"v_cmp_nlt_f32 vcc, {t0}, {t1}")
    k(f"v_mov_b32 {t1}, 0x5f800000")
    k(f"v_cmp_nle_f32 {sc1}, {Om[8]}, {t1}")
    k.nop(4)
    k(f"s_or_b64 vcc, vcc, {sc1}")
    fb = k.newlabel("fb"); fin = k.newlabel("fin")
    k(f"s_cbranch_scc1 {fb}")
    k.label(fin)
    k(f"v_rcp_f32 {t0}, {Om[8]}")
    k.nop(1)
    for i in range(8): k(f"v_mul_f32 {Om[i]}, {Om[i]}, {t0}")
    for i in range(4): k(f"v_cvt_pk_bf16_f32 {P[0][i]}, {Om[2*i]}, {Om[2*i+1]}")
    k(f"buffer_store_dwordx4 {P[0][0:4]}, {l16}, {wsrd}, {so} offen sc1")
    put_flag(sflag, fl2, t2)
    stp(1); stp.flush(wsrd, sw, 0, 0, st, t0, t1)
    k.label(lend)
    k("s_endpgm")
    k.label(fb)
    kvsrd = k.srd(ws, 0x20000, L.KVF, r=srdG)
    R = dict(Q=Q[0], C=C[0], O=Om, S=S, P=P, Kf=Kf, Vf=Vf, gk=l16, gv=gv, tmp=t0, tmp2=t1, sct=sct, vmask=vmask)
    emit_attn_fallback(k, R, kvsrd, lane, fin, sc=" sc1")
    k.release(mk0)
    k.label(lsvc)
    from mega_svc import emit_service
    emit_service(k, locals())
    return k

def build(path, stamps=0, stop=0, var=0):
    HDR = open("recurrent_scan__grouped_kv_mqa__geglu_ffn__prompt.s.ref").read().split("; Override launch")[0]
    k = mega_kernel("mega_kernel", stamps=stamps, stop=stop, var=var)
    errs = check_hazards(k.lines, k.name)
    open(path, "w").write(module_text(HDR, [k], [(k.name, 256, 768, LDS_ALL)]))
    print(path, "vgprs", k.vhigh, "sgprs", k.shigh, "hazards", len(errs))

if __name__ == "__main__":
    import sys
    if sys.argv[1] == "ship":
        build("recurrent_scan__grouped_kv_mqa__geglu_ffn__prompt.s")
    else:
        for a in sys.argv[1:]:
            stop, var = (a.split(":") + ["0"])[:2]
            build(f"t_mega{stop}_{var}.s", stamps=8, stop=int(stop), var=int(var))
```

```python
from asm import *
import layout as L
from p1 import fbits, C0, C1
import mega as M
MF = "v_mfma_f32_32x32x16_bf16"
MF16 = "v_mfma_f32_16x16x32_bf16"

def emit_service(k, E):
    g = lambda n: E[n]
    lane, l16, t0, t1, t2, t3, r16, kg = (g(x) for x in "lane l16 t0 t1 t2 t3 r16 kg".split())
    sw, srb, sj, st, st2, tag, sb = (g(x) for x in "sw srb sj st st2 tag sb".split())
    wsrd, xsrd, aW, stp, stop, var = (g(x) for x in "wsrd xsrd aW stp stop var".split())
    pk_, pv, pd, pwo, pout, mktag = (g(x) for x in "pk_ pv pd pwo pout mktag".split())
    sq = sb
    shf, sm = g("shf"), g("sm")
    SCD = "" if var & 2 else " sc1"
    dsrd = k.srd(pd, 1792 * 1024); wosrd = k.srd(pwo, 512 * 1024); outsrd = k.srd(pout, 2048 * 1024)
    so = k.s(); so2 = k.s(); sok = k.s(2); sspin = k.s(); sv = k.s(2)
    mkS = k.mark()
    aqx = [k.v(), k.v()]; aqw = [k.v(), k.v()]
    srow = k.s()
    k(f"s_lshl_b32 {srow}, {shf}, 1"); k(f"s_and_b32 {st}, {sq}, 1"); k(f"s_add_u32 {srow}, {srow}, {st}")
    k(f"v_lshrrev_b32 {t2}, 2, {r16}")
    k(f"v_and_b32 {t3}, 3, {lane}"); k(f"v_lshlrev_b32 {t3}, 3, {t3}")
    k(f"v_lshl_add_u32 {t1}, {kg}, 3, {t2}")
    k(f"v_lshl_add_u32 {aqw[0]}, {t1}, 7, {t3}")
    k(f"v_and_b32 {t0}, 1, {kg}"); k(f"v_lshrrev_b32 {t2}, 1, {t2}"); k(f"v_lshl_or_b32 {t0}, {t0}, 1, {t2}")
    k(f"s_and_b32 {st}, {sq}, 2"); k(f"v_xor_b32 {t0}, {st}, {t0}")
    k(f"v_lshl_add_u32 {aqw[0]}, {t0}, 5, {aqw[0]}")
    k(f"v_xor_b32 {aqw[1]}, 32, {aqw[0]}")
    k(f"v_lshrrev_b32 {t0}, 1, {r16}"); k(f"v_xor_b32 {t0}, {t0}, {kg}")
    k(f"v_lshlrev_b32 {aqx[0]}, 7, {r16}"); k(f"v_lshl_add_u32 {aqx[0]}, {t0}, 4, {aqx[0]}")
    k(f"s_lshl_b32 {st}, {srow}, 12"); k(f"s_add_u32 {st}, {st}, {M.XR}")
    k(f"v_add_u32 {aqx[0]}, {st}, {aqx[0]}"); k(f"v_xor_b32 {aqx[1]}, 64, {aqx[0]}")
    ones = k.v(4); fx = [k.v(4) for _ in range(2)]
    B4 = [k.v(16) for _ in range(3)]
    cs = [B4[0][4*T:4*T+4] for T in range(4)]; cw = [B4[1][4*T:4*T+4] for T in range(4)]
    gr = k.v(4)
    qx = [k.v(4), k.v(4)]; qw = [k.v(4), k.v(4)]; qa = [[k.v(4), k.v(4)], [k.v(4), k.v(4)]]; qcs = [k.v(4), k.v(4)]
    for r in range(4): k(f"v_mov_b32 {ones[r]}, 0x3f803f80"); k(f"v_mov_b32 {qcs[0][r]}, 0"); k(f"v_mov_b32 {qcs[1][r]}, 0")
    srb3 = k.s()
    k(f"s_and_b32 {srb3}, {srb}, 3")
    acw = k.v()
    k(f"s_lshl_b32 {st}, {srb3}, 2"); k(f"s_add_u32 {st}, {st}, {sq}")
    k(f"s_and_b32 {so}, {st}, 7"); k(f"s_lshl_b32 {so2}, {sq}, 1"); k(f"s_xor_b32 {so}, {so}, {so2}"); k(f"s_lshl_b32 {so}, {so}, 5")
    k(f"v_xor_b32 {acw}, {so}, {aW[0]}")
    k(f"s_lshr_b32 {st}, {st}, 3"); k(f"s_lshl_b32 {st}, {st}, 13"); k(f"v_add_u32 {acw}, {st}, {acw}")
    mktag()
    k(f"v_mov_b32 {gr[2]}, {tag[0]}"); k(f"v_mov_b32 {gr[3]}, {tag[1]}")
    k("s_setprio 3")
    fine = bool(stp.regs) and M.DBGWG is None
    if fine:
        vST = k.v(); sT = k.s(2)
        k(f"v_mov_b32 {vST}, 0")
    def qstep(n, extra=None):
        if fine: k(f"s_memrealtime {sT}")
        for i in range(2): k(f"ds_read_b128 {qx[i]}, {aqx[n & 1]} offset:{((n >> 1) % 3) * 16384 + i*2048}")
        for c in range(2):
            k(f"ds_read_b64_tr_b16 {qw[c][0:2]}, {aqw[c]} offset:{M.WQR + (n & 3)*4096}")
            k(f"ds_read_b64_tr_b16 {qw[c][2:4]}, {aqw[c]} offset:{M.WQR + (n & 3)*4096 + 512}")
        if n < 4:
            k(f"ds_read_b64_tr_b16 {cw[0][0:2]}, {acw} offset:{n*16384}")
            k(f"ds_read_b64_tr_b16 {cw[0][2:4]}, {acw} offset:{n*16384+1024}")
        k("s_waitcnt lgkmcnt(0)")
        if fine: k(f"v_writelane_b32 {vST}, {sT[0]}, {n}")
        for i in range(2):
            for c in range(2): k(f"{MF16} {qa[i][c]}, {qw[c]}, {qx[i]}, {qa[i][c] if n else 0}")
        if n < 4: k(f"{MF16} {cs[0]}, {cw[0]}, {ones}, {cs[0] if n else 0}")
        l_ = k.newlabel("nq")
        k(f"s_bitcmp{n & 1}_b32 {sq}, 0"); k(f"s_cbranch_scc0 {l_}")
        for c in range(2): k(f"{MF16} {qcs[c]}, {qw[c]}, {ones}, {qcs[c]}")
        k.label(l_)
    k("s_barrier")
    qstep(0)
    k("s_barrier")
    qstep(1)
    k("s_barrier")
    qstep(2)
    k("s_barrier")
    qstep(3)
    k("s_barrier")
    qstep(4)
    k(f"v_cmp_eq_u32 vcc, 1, {r16}")
    k(f"s_lshl_b32 {so2}, {sj}, 13"); k(f"s_add_u32 {so2}, {so2}, {L.CSP}")
    k(f"s_lshl_b32 {so}, {srb3}, 2"); k(f"s_add_u32 {so}, {so}, {sq}"); k(f"s_lshl_b32 {so}, {so}, 2")
    k(f"s_lshr_b32 {st}, {srb}, 2"); k(f"s_add_u32 {so}, {so}, {st}"); k(f"s_lshl_b32 {so}, {so}, 7"); k(f"s_add_u32 {so}, {so}, {so2}")
    k(f"v_cndmask_b32 {gr[0]}, {cs[0][0]}, {cs[0][2]}, vcc")
    k(f"v_cndmask_b32 {gr[1]}, {cs[0][1]}, {cs[0][3]}, vcc")
    k(f"v_lshlrev_b32 {t0}, 5, {kg}"); k(f"v_lshl_add_u32 {t0}, {r16}, 4, {t0}")
    k(f"s_mov_b32 exec_lo, 0x00030003"); k(f"s_mov_b32 exec_hi, 0x00030003")
    k(f"buffer_store_dwordx4 {gr}, {t0}, {wsrd}, {so} offen sc1")
    k("s_mov_b64 exec, -1")
    sxg = k.s(); sxc = k.s()
    k(f"s_getreg_b32 {sxc}, hwreg(HW_REG_XCC_ID)"); k(f"s_and_b32 {sxc}, {sxc}, 0xf")
    k(f"s_lshl_b32 {sxg}, {srb}, 1"); k(f"s_add_u32 {sxg}, {sxg}, {shf}"); k(f"s_lshl_b32 {sxg}, {sxg}, 7"); k(f"s_add_u32 {sxg}, {sxg}, {L.FL_O}")
    k(f"s_lshl_b32 {st}, {sm}, 4"); k(f"v_mov_b32 {t0}, {st}")
    k(f"v_mov_b32 {gr[0]}, {sxc}")
    l_ = k.newlabel("nx")
    k(f"s_cmp_lg_u32 {sq}, 0"); k(f"s_cbranch_scc1 {l_}")
    k("s_mov_b64 exec, 1")
    k(f"buffer_store_dwordx4 {gr}, {t0}, {wsrd}, {sxg} offen sc1")
    k("s_mov_b64 exec, -1")
    k.label(l_)
    for n in range(5, 14):
        k("s_barrier")
        if n < 13: qstep(n)
    GA = [B4[0][0:4], B4[0][4:8]]; GR = B4[2][0:4]; l9 = B4[2][4]; l7 = B4[2][5]; FK = fx[0]; GX = fx[1]
    sro = k.s(); skf = k.s()
    k(f"s_lshl_b32 {sro}, {srb}, 11"); k(f"s_lshl_b32 {st}, {sq}, 9"); k(f"s_add_u32 {sro}, {sro}, {st}"); k(f"s_add_u32 {sro}, {sro}, {L.ROWG}")
    k(f"s_lshl_b32 {st}, {sq}, 11"); k(f"s_add_u32 {so2}, {so2}, {st}")
    k(f"s_mov_b32 {skf}, {L.FL_KV}")
    k(f"v_and_b32 {l9}, 0x1ff, {l16}"); k(f"v_and_b32 {l7}, 0x7f, {l16}")
    k(f"v_lshlrev_b32 {t3}, 4, {r16}")
    def gather_issue():
        for i in range(2): k(f"buffer_load_dwordx4 {GA[i]}, {l16}, {wsrd}, {so2} offen offset:{i*1024} sc1")
        k(f"buffer_load_dwordx4 {GR}, {l9}, {wsrd}, {sro} offen sc1")
        k(f"buffer_load_dwordx4 {FK}, {t3}, {wsrd}, {skf} offen sc1")
        k(f"buffer_load_dwordx4 {GX}, {l7}, {wsrd}, {sxg} offen sc1")
    def tagcheck(regs):
        for n_, (a, b) in enumerate(regs):
            k(f"v_xor_b32 {t1}, {tag[0]}, {a}"); k(f"v_xor_b32 {t2}, {tag[1]}, {b}")
            k(f"v_or3_b32 {t0}, {t0 if n_ else 0}, {t1}, {t2}")
        k(f"v_cmp_ne_u32 vcc, 0, {t0}")
        k.nop(4)
        k(f"s_cmp_eq_u64 vcc, 0")
    def gather_finish():
        X = B4[1]
        for i in range(2):
            for c in range(2):
                k(f"v_add_f32 {GA[i][c]}, {GA[i][c]}, {GA[i][c]} row_ror:8 row_mask:0xf bank_mask:0xf")
        for i in range(2):
            for c in range(2): k(f"v_mov_b32 {X[2*i+c]}, {GA[i][c]}")
        k(f"v_rsq_f32 {t1}, {GR[1]}")
        k(f"v_mov_b32 {GR[3]}, {GR[1]}")
        for i in range(2):
            for c in range(2): k(f"v_permlane16_swap_b32 {GA[i][c]}, {X[2*i+c]}")
        k(f"v_mul_f32 {GR[1]}, {fbits(C0)}, {t1}")
        k(f"v_mul_f32 {t2}, {t1}, {t1}"); k(f"v_mul_f32 {t2}, {t2}, {t1}"); k(f"v_mul_f32 {GR[2]}, {fbits(C1)}, {t2}")
        for i in range(2):
            for c in range(2): k(f"v_add_f32 {GA[i][c]}, {GA[i][c]}, {X[2*i+c]}")
        k(f"s_lshl_b32 {st}, {sq}, 8"); k(f"s_add_u32 {st}, {st}, {M.CSO}")
        k(f"v_and_b32 {t0}, 7, {lane}"); k(f"v_lshl_add_u32 {t0}, {t0}, 3, {st}")
        k(f"v_lshrrev_b32 {t2}, 5, {lane}"); k(f"v_lshl_add_u32 {t0}, {t2}, 6, {t0}")
        k(f"ds_write_b64 {t0}, {GA[0][0:2]}"); k(f"ds_write_b64 {t0}, {GA[1][0:2]} offset:128")
        k(f"s_lshl_b32 {st}, {sq}, 9"); k(f"s_add_u32 {st}, {st}, {M.ROWC}")
        k(f"v_add_u32 {t0}, {st}, {l9}")
        k(f"ds_write_b128 {t0}, {GR}")
        k(f"v_cmp_ne_u32 vcc, {sxc}, {GX[0]}")
        k.nop(4)
        k("s_cmp_eq_u64 vcc, 0"); k(f"s_cselect_b32 {st}, {0 if var & 8 else 1}, 0")
        k(f"v_mov_b32 {t0}, {M.XLOC}"); k(f"v_mov_b32 {t1}, {st}")
        k(f"ds_write_b32 {t0}, {t1}")
    gregs = [(GA[i][2], GA[i][3]) for i in range(2)] + [(GR[2], GR[3]), (FK[0], FK[1]), (FK[2], FK[3]), (GX[2], GX[3])]
    gather_issue()
    qstep(13)
    k("s_barrier")
    qstep(14)
    k("s_barrier")
    qstep(15)
    def kv_dma(t_lo, n):
        k(f"s_mul_i32 {st}, {sq}, {n*1024}"); k(f"s_add_u32 {st}, {st}, {t_lo*1024}")
        k(f"s_add_u32 {st2}, {st}, {L.KVF}")
        for i in range(0, n, 4):
            k(f"s_mov_b32 m0, {st}"); k.nop(1)
            for j in range(4): k(f"buffer_load_dwordx4 {l16}, {wsrd}, {st2} offen offset:{j*1024}{SCD} lds")
            k(f"s_add_u32 {st}, {st}, 4096"); k(f"s_add_u32 {st2}, {st2}, 4096")
    k.nop(8)
    k(f"s_lshl_b32 {st}, {sq}, 7"); k(f"s_add_u32 {st}, {st}, {M.QCS}")
    k(f"v_lshl_add_u32 {t0}, {kg}, 4, {st}")
    k(f"ds_write_b128 {t0}, {qcs[0]}"); k(f"ds_write_b128 {t0}, {qcs[1]} offset:64")
    def spin(issue, regs, label, slp=2):
        lp = k.newlabel(label); lo = k.newlabel(label + "o")
        k(f"s_mov_b32 {sspin}, 0")
        k.label(lp)
        issue()
        k("s_waitcnt vmcnt(0)")
        tagcheck(regs)
        k(f"s_cbranch_scc1 {lo}")
        k(f"s_sleep {slp}")
        k(f"s_add_u32 {sspin}, {sspin}, 1"); k(f"s_cmp_lt_u32 {sspin}, {M.SPIN_MAX}")
        k(f"s_cbranch_scc1 {lp}")
        k.label(lo)
    lg = k.newlabel("gok")
    k("s_waitcnt vmcnt(0)")
    tagcheck(gregs)
    k(f"s_cselect_b32 {sok[0]}, 1, 0"); k(f"s_mov_b32 {sok[1]}, 0")
    k(f"s_cbranch_scc1 {lg}")
    spin(gather_issue, gregs, "gsp", 8)
    k.label(lg)
    kv_dma(0, 8)
    gather_finish()
    stp(2)
    k("s_waitcnt lgkmcnt(0)")
    k("s_barrier")
    RQ = [B4[0][0:4], B4[0][4:8]]; CQ = [[qcs[0], qcs[1]], [B4[1][0:4], B4[1][4:8]]]
    k(f"s_lshl_b32 {st}, {srow}, 9"); k(f"s_add_u32 {st}, {st}, {M.ROWC}")
    k(f"v_lshl_add_u32 {t0}, {r16}, 4, {st}")
    for i in range(2): k(f"ds_read_b64 {RQ[i][0:2]}, {t0} offset:{i*256}")
    k(f"s_xor_b32 {st}, {sq}, 1"); k(f"s_lshl_b32 {st}, {st}, 7"); k(f"s_add_u32 {st}, {st}, {M.QCS}")
    k(f"v_lshl_add_u32 {t1}, {kg}, 4, {st}")
    for c in range(2): k(f"ds_read_b128 {CQ[1][c]}, {t1} offset:{c*64}")
    k("s_waitcnt lgkmcnt(0)")
    for c in range(2):
        for r in range(4): k(f"v_add_f32 {CQ[0][c][r]}, {CQ[0][c][r]}, {CQ[1][c][r]}")
    k(f"s_lshl_b32 {st}, {sq}, 11"); k(f"s_add_u32 {st}, {st}, {M.QLDS}")
    k(f"v_lshl_add_u32 {t3}, {r16}, 4, {st}")
    k(f"v_and_b32 {t0}, 1, {kg}"); k(f"v_lshl_add_u32 {t3}, {t0}, 9, {t3}")
    k(f"v_lshrrev_b32 {t0}, 1, {kg}"); k(f"v_lshl_add_u32 {t3}, {t0}, 3, {t3}")
    for i in range(2):
        k(f"v_mul_f32 {RQ[i][1]}, {fbits(L.QSCALE / C0)}, {RQ[i][1]}")
        for c in range(2):
            for r in range(4): k(f"v_fma_f32 {qa[i][c][r]}, {CQ[0][c][r]}, {RQ[i][0]}, {qa[i][c][r]}")
            for r in range(4): k(f"v_mul_f32 {qa[i][c][r]}, {qa[i][c][r]}, {RQ[i][1]}")
            k(f"v_cvt_pk_bf16_f32 {qa[i][c][0]}, {qa[i][c][0]}, {qa[i][c][1]}")
            k(f"v_cvt_pk_bf16_f32 {qa[i][c][1]}, {qa[i][c][2]}, {qa[i][c][3]}")
            k(f"ds_write_b64 {t3}, {qa[i][c][0:2]} offset:{c*1024 + i*256}")
    stp(3)
    k("s_waitcnt vmcnt(0) lgkmcnt(0)")
    stp(4)
    k("s_barrier")
    kv_dma(32, 24)
    if fine:
        l_ = k.newlabel("nf")
        k(f"s_cmp_lg_u32 {sq}, 0"); k(f"s_cbranch_scc1 {l_}")
        k(f"s_lshl_b32 {st}, s2, 8"); k(f"s_add_u32 {st}, {st}, {L.STAMP + 64}")
        k(f"v_writelane_b32 {vST}, {sok[0]}, 16"); k(f"v_writelane_b32 {vST}, {sok[1]}, 17")
        k(f"v_lshlrev_b32 {t0}, 2, {lane}")
        k("s_mov_b64 exec, 0xffffffff")
        k(f"buffer_store_dword {vST}, {t0}, {wsrd}, {st} offen")
        k("s_mov_b64 exec, -1")
        k.label(l_)
    k.nop(2)
    k.release(mkS)
    srt0 = k.s(); sho = k.s(); sho1 = k.s(); sdo = k.s(); sdo1 = k.s(); sring = k.s()
    k(f"s_lshl_b32 {st}, {shf}, 1"); k(f"s_lshl_b32 {srt0}, {srb}, 2"); k(f"s_add_u32 {srt0}, {srt0}, {st}")
    k(f"s_mul_i32 {sho}, {srt0}, 112"); k(f"s_mul_i32 {st}, {sq}, 28"); k(f"s_add_u32 {sho}, {sho}, {st}"); k(f"s_lshl_b32 {sho}, {sho}, 10")
    k(f"s_add_u32 {sho}, {sho}, {L.HF}")
    k(f"s_add_u32 {sho1}, {sho}, {112 * 1024}")
    k(f"s_bitcmp1_b32 {sq}, 0")
    k(f"s_cselect_b32 {st2}, {sho1}, {sho}"); k(f"s_cselect_b32 {sho1}, {sho}, {sho1}"); k(f"s_mov_b32 {sho}, {st2}")
    scb = k.s()
    k(f"s_lshl_b32 {scb}, {sm}, 7")
    k(f"s_lshl_b32 {sdo}, {st}, 14"); k(f"s_add_u32 {sdo}, {sdo}, {scb}")
    k(f"s_add_u32 {sdo1}, {sdo}, {8192 - 1024}")
    k(f"s_lshl_b32 {sring}, {sq}, 13"); k(f"s_add_u32 {sring}, {sring}, {M.DRING}")
    vW = k.v(); aw = [k.v(), k.v()]; aw0 = k.v()
    k(f"v_lshrrev_b32 {t0}, 3, {lane}"); k(f"v_lshlrev_b32 {vW}, 10, {t0}")
    k(f"v_bfe_u32 {t0}, {lane}, 4, 1"); k(f"v_lshlrev_b32 {t0}, 2, {t0}")
    k(f"v_and_b32 {t1}, 7, {lane}"); k(f"v_xor_b32 {t0}, {t0}, {t1}")
    k(f"v_lshl_add_u32 {vW}, {t0}, 4, {vW}")
    k(f"v_bfe_u32 {t0}, {lane}, 2, 2"); k(f"v_lshlrev_b32 {aw0}, 7, {t0}")
    k(f"v_lshrrev_b32 {t1}, 5, {lane}"); k(f"v_lshl_add_u32 {aw0}, {t1}, 9, {aw0}")
    k(f"v_bfe_u32 {t0}, {lane}, 3, 1"); k(f"v_lshl_add_u32 {aw0}, {t0}, 6, {aw0}")
    k(f"v_bfe_u32 {t0}, {lane}, 4, 1"); k(f"v_lshl_add_u32 {aw0}, {t0}, 5, {aw0}")
    k(f"v_and_b32 {t0}, 3, {lane}"); k(f"v_lshl_add_u32 {aw0}, {t0}, 3, {aw0}")
    k(f"v_add_u32 {aw[0]}, {sring}, {aw0}")
    k(f"s_and_b32 {st2}, {sq}, 2"); k(f"s_lshl_b32 {st2}, {st2}, 5"); k(f"v_xor_b32 {aw[0]}, {st2}, {aw[0]}")
    k(f"v_xor_b32 {aw[1]}, 64, {aw[0]}")
    DA = [[k.v(16) for ct in range(2)] for rt in range(2)]
    HB = k.v(64)
    DEP = 4
    Hf = [[HB[8*s_:8*s_+4], HB[8*s_+4:8*s_+8]] for s_ in range(DEP)]
    Wf = [k.v(4), k.v(4)]
    Gv = k.v(16)
    for rt in range(2):
        for ct in range(2):
            for i in range(16): k(f"v_mov_b32 {DA[rt][ct][i]}, 0")
    k(f"s_lshl_b32 {so}, {srb}, 1"); k(f"s_add_u32 {so}, {so}, {shf}"); k(f"s_lshl_b32 {so}, {so}, 9")
    k(f"s_add_u32 {so}, {so}, {L.FL_H}")
    k(f"v_lshlrev_b32 {t3}, 3, {lane}")
    FP = Wf[0]
    k("s_waitcnt vmcnt(0)")
    k("s_barrier")
    spin(lambda: k(f"buffer_load_dwordx2 {FP[0:2]}, {t3}, {wsrd}, {so} offen sc1"), [(FP[0], FP[1])], "hsp", 8)
    k("s_setprio 0")
    stp(5)
    def issue(slot):
        k(f"s_add_u32 m0, {sring}, {slot * 2048}")
        k(f"buffer_load_dwordx4 {Hf[slot][0]}, {l16}, {wsrd}, {sho} offen offset:{slot*1024}{SCD}")
        k(f"buffer_load_dwordx4 {vW}, {dsrd}, {sdo} offen lds")
        k(f"buffer_load_dwordx4 {vW}, {dsrd}, {sdo1} offen offset:1024 lds")
        k(f"buffer_load_dwordx4 {Hf[slot][1]}, {l16}, {wsrd}, {sho1} offen offset:{slot*1024}{SCD}")
        k(f"s_add_u32 {sdo}, {sdo}, 16384"); k(f"s_add_u32 {sdo1}, {sdo1}, 16384")
        if slot == DEP - 1:
            k(f"s_add_u32 {sho}, {sho}, {DEP*1024}"); k(f"s_add_u32 {sho1}, {sho1}, {DEP*1024}")
    def dstep(s_, vm):
        k(f"s_waitcnt vmcnt({vm})")
        for ct in range(2):
            k(f"ds_read_b64_tr_b16 {Wf[ct][0:2]}, {aw[ct]} offset:{s_*2048}")
            k(f"ds_read_b64_tr_b16 {Wf[ct][2:4]}, {aw[ct]} offset:{s_*2048+1024}")
        k("s_waitcnt lgkmcnt(0)")
        for rt in range(2):
            for ct in range(2):
                k(f"{MF} {DA[rt][ct]}, {Wf[ct]}, {Hf[s_][rt]}, {DA[rt][ct]}")
    for s_ in range(DEP): issue(s_)
    sit = k.s()
    k(f"s_mov_b32 {sit}, 0")
    dl = k.newlabel("dloop")
    k.label(dl)
    for s_ in range(DEP):
        dstep(s_, 4 * (DEP - 1)); issue(s_)
    k(f"s_add_u32 {sit}, {sit}, 1")
    k(f"s_cmp_lt_u32 {sit}, {28 // DEP - 1}")
    k(f"s_cbranch_scc1 {dl}")
    for s_ in range(DEP): dstep(s_, 4 * (DEP - 1 - s_))
    stp(6)
    vx = aW[0]
    sxo = k.s()
    k(f"v_and_b32 {t0}, 31, {lane}"); k(f"v_lshlrev_b32 {vx}, 10, {t0}")
    k(f"v_lshrrev_b32 {t1}, 5, {lane}"); k(f"v_lshl_add_u32 {vx}, {t1}, 3, {vx}")
    k(f"s_and_b32 {st}, {sq}, 1"); k(f"s_add_u32 {sxo}, {srt0}, {st}"); k(f"s_lshl_b32 {sxo}, {sxo}, 15"); k(f"s_add_u32 {sxo}, {sxo}, {scb}")
    k(f"s_lshr_b32 {st}, {sq}, 1"); k(f"s_lshl_b32 {st}, {st}, 6"); k(f"s_add_u32 {sxo}, {sxo}, {st}")
    k("s_setprio 3")
    XR_ = HB[0:8]
    for g4 in range(4): k(f"buffer_load_dwordx2 {XR_[2*g4:2*g4+2]}, {vx}, {xsrd}, {sxo} offen offset:{16*g4}")
    k(f"v_add_u32 {t2}, {sring}, {l16}")
    k.nop(6)
    for j in range(4): k(f"ds_write_b128 {t2}, {DA[1][0][4*j:4*j+4]} offset:{j*1024}")
    for j in range(4): k(f"ds_write_b128 {t2}, {DA[0][1][4*j:4*j+4]} offset:{4096 + j*1024}")
    k(f"s_lshl_b32 {st}, {sq}, 12")
    k(f"v_add_u32 {aw0}, {st}, {l16}")
    for j in range(4): k(f"ds_write_b128 {aw0}, {DA[1][1][4*j:4*j+4]} offset:{j*1024}")
    k(f"v_xor_b32 {aw[0]}, 8192, {t2}"); k(f"v_xor_b32 {aw[1]}, 16384, {t2}"); k(f"v_xor_b32 {aw0}, 12288, {aw0}")
    k(f"v_and_b32 {t3}, 7, {lane}"); k(f"v_lshlrev_b32 {t3}, 3, {t3}")
    k(f"s_lshl_b32 {so}, s2, 6"); k(f"s_add_u32 {so}, {so}, {L.FL_P}")
    spin(lambda: k(f"buffer_load_dwordx2 {FP[0:2]}, {t3}, {wsrd}, {so} offen sc1"), [(FP[0], FP[1])], "psp", 8)
    k(f"s_lshl_b32 {sdo}, {sq}, 17"); k(f"s_add_u32 {sdo}, {sdo}, {scb}")
    k(f"s_lshl_b32 {st2}, {sq}, 14"); k(f"s_add_u32 {st2}, {st2}, {M.WOL}")
    for i in range(16):
        k(f"s_add_u32 m0, {st2}, {i*1024}"); k.nop(1)
        k(f"buffer_load_dwordx4 {vW}, {wosrd}, {sdo} offen lds")
        k(f"s_add_u32 {sdo}, {sdo}, 8192")
    k("s_waitcnt vmcnt(0) lgkmcnt(0)")
    k("s_barrier")
    k("s_barrier")
    for j in range(4): k(f"ds_read_b128 {DA[1][0][4*j:4*j+4]}, {aw[0]} offset:{j*1024}")
    for j in range(4): k(f"ds_read_b128 {DA[0][1][4*j:4*j+4]}, {aw[1]} offset:{4096 + j*1024}")
    for j in range(4): k(f"ds_read_b128 {DA[1][1][4*j:4*j+4]}, {aw0} offset:{j*1024}")
    k("s_waitcnt lgkmcnt(0)")
    k("s_barrier")
    for i in range(16): k(f"v_add_f32 {DA[0][0][i]}, {DA[0][0][i]}, {DA[1][0][i]}")
    for i in range(16): k(f"v_add_f32 {DA[0][1][i]}, {DA[0][1][i]}, {DA[1][1][i]}")
    for i in range(16): k(f"v_add_f32 {Gv[i]}, {DA[0][0][i]}, {DA[0][1][i]}")
    T = HB[16:32]
    for i in range(16): k(f"v_mul_f32 {T[i]}, {fbits(-1.4426950408889634)}, {Gv[i]}")
    for i in range(16): k(f"v_exp_f32 {T[i]}, {T[i]}")
    for i in range(16): k(f"v_add_f32 {T[i]}, 1.0, {T[i]}")
    for i in range(16): k(f"v_rcp_f32 {T[i]}, {T[i]}")
    for i in range(16): k(f"v_mul_f32 {Gv[i]}, {Gv[i]}, {T[i]}")
    for i in range(8):
        k(f"v_lshlrev_b32 {T[2*i]}, 16, {XR_[i]}"); k(f"v_and_b32 {T[2*i+1]}, 0xffff0000, {XR_[i]}")
    k(f"s_lshl_b32 {st}, {sq}, 14"); k(f"s_add_u32 {st}, {st}, {M.XCH}")
    k(f"s_cmp_eq_u32 {sq}, 3"); k(f"s_cselect_b32 {st}, 0, {st}")
    k(f"v_add_u32 {t2}, {st}, {l16}")
    k("s_barrier")
    stp(7)
    for j in range(4):
        for q_ in range(4): k(f"ds_read_b128 {DA[q_ & 1][q_ >> 1][4*j:4*j+4]}, {t2} offset:{q_*4096 + j*1024}")
        if j >= 2: k("s_waitcnt lgkmcnt(8)")
    for j in range(4):
        k(f"s_waitcnt lgkmcnt({max(0, 12 - 4*j - 0) if j >= 2 else 8})" if False else f"s_waitcnt lgkmcnt({[8, 8, 4, 0][j]})")
        for i in range(4*j, 4*j+4):
            k(f"v_add_f32 {DA[0][0][i]}, {DA[0][0][i]}, {DA[1][0][i]}"); k(f"v_add_f32 {DA[0][1][i]}, {DA[0][1][i]}, {DA[1][1][i]}")
        for i in range(4*j, 4*j+4): k(f"v_add_f32 {DA[0][0][i]}, {DA[0][0][i]}, {DA[0][1][i]}")
        for i in range(4*j, 4*j+4): k(f"v_fma_f32 {DA[0][0][i]}, {DA[0][0][i]}, {Gv[i]}, {T[i]}")
        for i in range(2*j, 2*j+2): k(f"v_cvt_pk_bf16_f32 {XR_[i]}, {DA[0][0][2*i]}, {DA[0][0][2*i+1]}")
        k(f"buffer_store_dwordx2 {XR_[2*j:2*j+2]}, {vx}, {outsrd}, {sxo} offen offset:{16*j}")
    l_ = k.newlabel("nn")
    k(f"s_lshl_b32 {st}, s2, 4"); k(f"s_add_u32 {st}, {st}, {sq}")
    k(f"s_cmp_lg_u32 {st}, 0"); k(f"s_cbranch_scc1 {l_}")
    k(f"v_mov_b32 {FP[0]}, {tag[0]}"); k(f"v_mov_b32 {FP[1]}, {tag[1]}"); k(f"v_mov_b32 {t0}, 0")
    k(f"s_mov_b32 {st}, {L.NONCE}")
    k("s_mov_b64 exec, 1")
    k(f"buffer_store_dwordx2 {FP[0:2]}, {t0}, {wsrd}, {st} offen sc1")
    k("s_mov_b64 exec, -1")
    k.label(l_)
    if stp.regs:
        k("s_waitcnt vmcnt(0)")
        stp(1); stp.flush(wsrd, sw, 8, 8, st, t0, t1)
    k("s_endpgm")
```

```python
from asm import *
import layout as L
from p1 import fbits, C0, C1
from attn import emit_attn_fallback
from p2b import attn_loop
MF = "v_mfma_f32_32x32x16_bf16"
MF16 = "v_mfma_f32_16x16x32_bf16"
LDS_ALL = 163840
WR = 49152
XR = 114688
ROWC = 147456
CSO = ROWC + 2048
QLDS = ROWC + 4096
TASKX = 0
TASKW = 16384
WQR = 32768
XLOC = ROWC + 3584
QCS = ROWC + 3072
DRING = 131072
SPIN_MAX = 1 << 15
WOL = 16384
OXC = 81920
XCH = 114688
PROG = 0
TQ3 = 1024

DBGWG = None
class St:
    def __init__(self, k, n): self.k = k; self.regs = [k.s(2) for _ in range(n)]
    def __call__(self, i, cyc=False):
        if i < len(self.regs): self.k(f"{'s_memtime' if cyc else 's_memrealtime'} {self.regs[i]}")
    def flush(self, wsrd_big, sw, wave, base, st, t0, t1):
        if not self.regs: return
        k = self.k
        if DBGWG is not None:
            l = k.newlabel("nost")
            pdg = k.s(2)
            k(f"s_load_dwordx2 {pdg}, s[0:1], 80")
            k("s_waitcnt lgkmcnt(0)")
            k(f"s_cmp_lg_u32 {sw}, {wave}"); k(f"s_cbranch_scc1 {l}")
            k(f"s_cmp_lg_u32 s2, {DBGWG}"); k(f"s_cbranch_scc1 {l}")
            k(f"v_mov_b32 {t1}, 0")
            for i, r in enumerate(self.regs):
                k(f"s_sub_u32 {st}, {r[0]}, {self.regs[0][0]}")
                k(f"v_mov_b32 {t0}, {st}")
                k(f"global_store_dword {t1}, {t0}, {pdg} offset:{4*(base+i)}")
                k.nop(1)
            k.label(l)
            return
        l = k.newlabel("nost")
        k("s_waitcnt lgkmcnt(0)")
        k(f"s_cmp_lg_u32 {sw}, {wave}"); k(f"s_cbranch_scc1 {l}")
        k(f"s_lshl_b32 {st}, s2, 8"); k(f"s_add_u32 {st}, {st}, {L.STAMP}")
        k(f"v_mov_b32 {t1}, 0")
        for i, r in enumerate(self.regs):
            k(f"v_mov_b32 {t0}, {r[0]}")
            k(f"buffer_store_dword {t0}, {t1}, {wsrd_big}, {st} offen offset:{4*(base+i)}")
            k.nop(1)
        k.label(l)

def mega_kernel(name, stamps=0, stop=0, var=0):
    k = Kernel(name, 256, 768, LDS_ALL, nvgpr=168)
    lend = k.newlabel("end")
    k("s_cmp_ge_u32 s2, 256")
    k(f"s_cbranch_scc1 {lend}")
    pa = k.s(8); pb = k.s(8); pwo = k.s(2); ws = k.s(2)
    px, pq, pk_, pv = pa[0:2], pa[2:4], pa[4:6], pa[6:8]
    pg, pu, pd, pout = pb[0:2], pb[2:4], pb[4:6], pb[6:8]
    k(f"s_load_dwordx8 {pa}, s[0:1], 0")
    k(f"s_load_dwordx8 {pb}, s[0:1], 48")
    k(f"s_load_dwordx2 {ws}, s[0:1], 88")
    k(f"s_load_dwordx2 {pwo}, s[0:1], 32")
    stp = St(k, stamps)
    stp(0)
    lane = k.v(); l16 = k.v(); t0 = k.v(); t1 = k.v(); t2 = k.v(); t3 = k.v(); r16 = k.v(); kg = k.v()
    sw = k.s(); srb = k.s(); sj = k.s(); st = k.s(); st2 = k.s(); tag = k.s(2)
    k(f"v_lshrrev_b32 {t0}, 6, v0")
    k(f"v_and_b32 {lane}, 63, v0")
    k(f"v_readfirstlane_b32 {sw}, {t0}")
    k(f"v_lshlrev_b32 {l16}, 4, {lane}")
    k(f"v_and_b32 {r16}, 15, {lane}")
    k(f"v_lshrrev_b32 {kg}, 4, {lane}")
    k(f"s_and_b32 {srb}, s2, 3"); k(f"s_lshl_b32 {srb}, {srb}, 2")
    k(f"s_bfe_u32 {st}, s2, 0x20003"); k(f"s_add_u32 {srb}, {srb}, {st}")
    shf = k.s(); sm = k.s()
    k(f"s_bfe_u32 {shf}, s2, 0x10002"); k(f"s_mul_i32 {sj}, {shf}, 7")
    k(f"s_lshr_b32 {sm}, s2, 5"); k(f"s_add_u32 {sj}, {sj}, {sm}"); k(f"s_add_u32 {st2}, {shf}, 14")
    k(f"s_cmp_eq_u32 {sm}, 7"); k(f"s_cselect_b32 {sj}, {st2}, {sj}")
    sb = k.s()
    k(f"s_and_b32 {sb}, {sw}, 3")
    aW = [k.v(), k.v()]
    k(f"v_lshrrev_b32 {t0}, 2, {r16}")
    k(f"v_lshl_add_u32 {t1}, {kg}, 3, {t0}")
    k(f"v_and_b32 {t2}, 1, {kg}"); k(f"v_lshl_add_u32 {t2}, {t2}, 2, {t0}")
    k(f"s_lshl_b32 {st}, {sb}, 1")
    k(f"v_xor_b32 {t2}, {st}, {t2}")
    k(f"v_lshlrev_b32 {aW[0]}, 8, {t1}")
    k(f"v_lshl_add_u32 {aW[0]}, {t2}, 5, {aW[0]}")
    k(f"v_and_b32 {t2}, 3, {lane}"); k(f"v_lshl_add_u32 {aW[0]}, {t2}, 3, {aW[0]}")
    k(f"v_add_u32 {aW[0]}, {WR}, {aW[0]}")
    k(f"v_xor_b32 {aW[1]}, 32, {aW[0]}")
    k("s_waitcnt lgkmcnt(0)")
    wsrd = k.srd(ws, 0x2000000)
    xsrd = k.srd(px, 2048 * 1024)
    nb = k.s(2)
    k(f"s_add_u32 {nb[0]}, {ws[0]}, {L.NONCE}"); k(f"s_addc_u32 {nb[1]}, {ws[1]}, 0")
    k(f"s_load_dwordx2 {tag}, {nb}, 0")
    lsvc = k.newlabel("svc")
    k(f"s_cmp_ge_u32 {sw}, 8")
    k(f"s_cbranch_scc1 {lsvc}")
    mk0 = k.mark()
    def mktag():
        k("s_waitcnt lgkmcnt(0)")
        k(f"s_mul_i32 {tag[0]}, {tag[0]}, 1664525"); k(f"s_add_u32 {tag[0]}, {tag[0]}, 1013904223")
        k(f"s_mul_i32 {tag[1]}, {tag[1]}, 22695477"); k(f"s_add_u32 {tag[1]}, {tag[1]}, 1")
    sa = k.s(); scol = k.s(); sks = k.s(); sWo = k.s(); sxu = k.s(); sXo = k.s(); sXb = k.s()
    sldW = k.s(); sldX = k.s(); sxs = k.s(); sldQ = k.s(); sqc = k.s(); sQo = k.s()
    srdG = k.srd(pg, 512*3584); srdU = k.srd(pu, 512*3584); srdQ = k.srd(pq, 512*1024)
    k(f"s_lshr_b32 {sa}, {sw}, 2")
    k(f"s_lshl_b32 {scol}, {sj}, 8"); k(f"s_lshl_b32 {sqc}, {sm}, 7")
    k(f"s_and_b32 {sks}, {srb}, 12")
    k(f"s_lshr_b32 {sxu}, {sks}, 1")
    vW = k.v(); vX = [k.v(), k.v()]; vQ = k.v()
    k(f"s_lshl_b32 {st}, {sw}, 2"); k(f"v_add_u32 {t0}, {st}, {kg}")
    k(f"v_mul_u32_u24 {vW}, 3584, {t0}")
    k(f"s_and_b32 {st2}, {sw}, 2"); k(f"s_lshl_b32 {st}, {st2}, 2")
    k(f"v_lshlrev_b32 {t1}, 1, {kg}"); k(f"v_add_u32 {t1}, {st}, {t1}")
    k(f"v_xor_b32 {t1}, {t1}, {r16}")
    k(f"v_lshl_add_u32 {vW}, {t1}, 4, {vW}")
    k(f"v_lshrrev_b32 {t0}, 3, {lane}"); k(f"v_lshlrev_b32 {vX[0]}, 10, {t0}")
    k(f"v_and_b32 {t1}, 7, {lane}"); k(f"v_xor_b32 {t1}, {t1}, {kg}")
    k(f"v_lshl_add_u32 {vX[0]}, {t1}, 4, {vX[0]}")
    k(f"v_xor_b32 {vX[1]}, 64, {vX[0]}"); k(f"v_add_u32 {vX[1]}, 8192, {vX[1]}")
    k(f"s_lshl_b32 {st}, {sw}, 2"); k(f"v_lshrrev_b32 {t0}, 3, {lane}"); k(f"v_add_u32 {t0}, {st}, {t0}")
    k(f"v_and_b32 {t2}, 1, {kg}"); k(f"v_or_b32 {t2}, {st2}, {t2}"); k(f"v_lshlrev_b32 {t2}, 1, {t2}")
    k(f"v_and_b32 {t1}, 7, {lane}"); k(f"v_xor_b32 {t1}, {t2}, {t1}")
    k(f"v_lshlrev_b32 {vQ}, 10, {t0}"); k(f"v_lshl_add_u32 {vQ}, {t1}, 4, {vQ}")
    k(f"s_lshl_b32 {sXb}, {srb}, 17"); k(f"s_lshl_b32 {st}, {sw}, 14"); k(f"s_add_u32 {sXb}, {sXb}, {st}")
    k(f"s_lshl_b32 {sldW}, {sw}, 10"); k(f"s_add_u32 {sldW}, {sldW}, {WR}")
    k(f"s_lshl_b32 {sldX}, {sw}, 11"); k(f"s_add_u32 {sldX}, {sldX}, {XR}")
    k(f"s_lshl_b32 {sldQ}, {sw}, 9"); k(f"s_add_u32 {sldQ}, {sldQ}, {WQR}")
    k(f"s_mov_b32 {sxs}, {sldX}")
    def dma_w(slot):
        k(f"s_mul_i32 {sWo}, {sks}, {32*3584}")
        k(f"s_add_u32 m0, {sldW}, {slot*16384}")
        k(f"s_add_u32 {sWo}, {sWo}, {scol}")
        k(f"buffer_load_dwordx4 {vW}, {srdG}, {sWo} offen lds")
        k(f"s_add_u32 m0, {sldW}, {slot*16384 + 8192}")
        k.nop(1)
        k(f"buffer_load_dwordx4 {vW}, {srdU}, {sWo} offen lds")
    def dma_q(slot):
        k(f"s_lshl_b32 {sQo}, {sks}, 15")
        k(f"s_add_u32 m0, {sldQ}, {slot*4096}")
        k(f"s_add_u32 {sQo}, {sQo}, {sqc}")
        k("s_mov_b64 exec, 0xffffffff")
        k(f"buffer_load_dwordx4 {vQ}, {srdQ}, {sQo} offen lds")
        k("s_mov_b64 exec, -1")
        k(f"s_add_u32 {sks}, {sks}, 1"); k(f"s_and_b32 {sks}, {sks}, 15")
    def dma_x(e):
        if e == 0:
            k(f"s_lshl_b32 {sXo}, {sxu}, 7")
            k(f"s_mov_b32 m0, {sxs}")
            k(f"s_add_u32 {sXo}, {sXo}, {sXb}")
            k(f"buffer_load_dwordx4 {vX[0]}, {xsrd}, {sXo} offen lds")
        else:
            k(f"s_add_u32 m0, {sxs}, 1024")
            k(f"s_add_u32 {sxu}, {sxu}, 1")
            k(f"buffer_load_dwordx4 {vX[1]}, {xsrd}, {sXo} offen lds")
            k(f"s_and_b32 {sxu}, {sxu}, 7")
            k(f"s_add_u32 {sxs}, {sxs}, 16384")
            k(f"s_cmp_ge_u32 {sxs}, {XR + 3*16384}")
            k(f"s_cselect_b32 {sxs}, {sldX}, {sxs}")
    sit = k.s(); so = k.s(); sflag = k.s()
    llight = k.newlabel("light"); lep = k.newlabel("epdone")
    k(f"s_cmp_ge_u32 {sj}, 14")
    k(f"s_cbranch_scc1 {llight}")
    dma_w(0); dma_x(0); dma_x(1); dma_q(0)
    aX = [k.v(), k.v()]
    k(f"v_lshrrev_b32 {t0}, 1, {r16}"); k(f"v_xor_b32 {t0}, {t0}, {kg}")
    k(f"v_lshlrev_b32 {aX[0]}, 7, {r16}"); k(f"v_lshl_add_u32 {aX[0]}, {t0}, 4, {aX[0]}")
    k(f"v_xor_b32 {aX[1]}, 64, {aX[0]}")
    k(f"s_lshl_b32 {st}, {sa}, 13"); k(f"s_add_u32 {st}, {st}, {XR}")
    k(f"v_add_u32 {aX[0]}, {st}, {aX[0]}"); k(f"v_add_u32 {aX[1]}, {st}, {aX[1]}")
    mkA = k.mark()
    acc = [[k.v(4) for T in range(4)] for i in range(4)]
    fX = [[k.v(4) for i in range(4)] for _ in range(2)]
    fW = [[k.v(4) for T in range(4)] for _ in range(2)]
    for i in range(4):
        for T in range(4):
            for r in range(4): k(f"v_mov_b32 {acc[i][T][r]}, 0")
    sxr = k.s(); sdl = k.s()
    k(f"s_mov_b32 {sxr}, 0")
    def reads(slot, fb, par):
        R = [f"ds_read_b128 {fX[fb][i]}, {aX[par]} offset:{i*2048}" for i in range(4)]
        W = []
        for T in range(4):
            o = slot * 16384 + (T & 1) * 8192
            W.append(f"ds_read_b64_tr_b16 {fW[fb][T][0:2]}, {aW[T >> 1]} offset:{o}")
            W.append(f"ds_read_b64_tr_b16 {fW[fb][T][2:4]}, {aW[T >> 1]} offset:{o+1024}")
        return [R[0], W[0], W[1], R[1], W[2], W[3], R[2], W[4], W[5], R[3], W[6], W[7]]
    def xadv(par):
        if par == 0:
            k(f"s_add_u32 {sxr}, {sxr}, 1"); k(f"s_cmp_eq_u32 {sxr}, 3")
            k(f"s_cselect_b32 {sxr}, 0, {sxr}"); k(f"s_mov_b32 {sdl}, 16384")
            k(f"s_cselect_b32 {sdl}, {(-32768) & 0xffffffff}, {sdl}")
        k(f"v_add_u32 {aX[par]}, {sdl}, {aX[par]}")
    dma_w(1); dma_q(1); dma_x(0)
    dma_w(2); dma_q(2); dma_x(1)
    dma_w(3); dma_q(3); dma_x(0)
    mktag()
    k("s_waitcnt vmcnt(12)")
    k("s_barrier")
    stp(2)
    for r in reads(0, 0, 0): k(r)
    xadv(0)
    def stage(u, vm, do_dma, do_read, lastx=False):
        fb = u & 1
        k(f"s_waitcnt vmcnt({vm}) lgkmcnt(0)" if vm is not None else "s_waitcnt lgkmcnt(0)")
        k("s_barrier")
        R = reads((u + 1) % 4, fb ^ 1, fb ^ 1) if do_read else []
        j = 0
        for i in range(4):
            for T in range(4):
                k(f"{MF16} {acc[i][T]}, {fW[fb][T]}, {fX[fb][i]}, {acc[i][T]}")
                if j < len(R): k(R[j])
                if j == 12 and do_read: xadv(fb ^ 1)
                if j == 2 and do_dma: dma_w(u)
                if j == 5 and do_dma: dma_q(u)
                if j == 8 and do_dma:
                    if lastx:
                        l_ = k.newlabel("nox")
                        k(f"s_cmp_eq_u32 {sit}, 2"); k(f"s_cbranch_scc1 {l_}")
                        dma_x(0); k.label(l_)
                    else: dma_x((u & 1) ^ 1)
                j += 1
    k(f"s_mov_b32 {sit}, 0")
    loop = k.newlabel("p1loop")
    k(".p2align 6")
    k.label(loop)
    for u in range(4): stage(u, 8, True, True, lastx=(u == 3))
    k(f"s_add_u32 {sit}, {sit}, 1")
    k(f"s_cmp_lt_u32 {sit}, 3")
    k(f"s_cbranch_scc1 {loop}")
    stage(0, 7, False, True); stage(1, 3, False, True); stage(2, 0, False, True); stage(3, None, False, False)
    stp(3)
    RC = fX[0]; CS = fW[0]
    k(f"s_lshl_b32 {st}, {sa}, 10"); k(f"s_add_u32 {st}, {st}, {ROWC}")
    k(f"v_lshl_add_u32 {t0}, {r16}, 4, {st}")
    for i in range(4): k(f"ds_read_b128 {RC[i]}, {t0} offset:{i*256}")
    k(f"s_lshl_b32 {st}, {sb}, 7"); k(f"s_add_u32 {st}, {st}, {CSO}")
    k(f"v_lshl_add_u32 {t1}, {kg}, 4, {st}")
    for T in range(4): k(f"ds_read_b128 {CS[T]}, {t1} offset:{(T & 1) * 512 + (T >> 1) * 64}")
    vst = k.v()
    k(f"v_lshlrev_b32 {vst}, 4, {r16}"); k(f"v_lshl_add_u32 {vst}, {kg}, 9, {vst}")
    tm = [fX[1][j // 2][2*(j&1):2*(j&1)+2] for j in range(8)]
    outp = [fW[1][0], fW[1][1]]
    k(f"s_lshl_b32 {so}, {srb}, 1"); k(f"s_add_u32 {so}, {so}, {sa}"); k(f"s_mul_i32 {so}, {so}, 224")
    k(f"s_lshl_b32 {st}, {sj}, 3"); k(f"s_add_u32 {so}, {so}, {st}"); k(f"s_lshl_b32 {st}, {sb}, 1"); k(f"s_add_u32 {so}, {so}, {st}")
    k(f"s_lshl_b32 {so}, {so}, 10"); k(f"s_add_u32 {so}, {so}, {L.HF}")
    k("s_waitcnt lgkmcnt(0)")
    for i in range(4):
        rcv = RC[i]; o = outp[i & 1]
        GR_ = [(acc[i][2*lp][2*h:2*h+2], acc[i][2*lp+1][2*h:2*h+2], CS[2*lp][2*h:2*h+2], CS[2*lp+1][2*h:2*h+2], tm[2*lp+h]) for lp in range(2) for h in range(2)]
        for (g, u, cg_, cu_, z_) in GR_: k(f"v_pk_fma_f32 {g}, {cg_}, {rcv[0:2]}, {g} op_sel_hi:[1,0,1]")
        for (g, u, cg_, cu_, z_) in GR_: k(f"v_pk_mul_f32 {z_}, {g}, {g}")
        for (g, u, cg_, cu_, z_) in GR_: k(f"v_pk_fma_f32 {z_}, {z_}, {rcv[2:4]}, {rcv[0:2]} op_sel:[0,0,1] op_sel_hi:[1,0,1]")
        for (g, u, cg_, cu_, z_) in GR_: k(f"v_pk_mul_f32 {z_}, {z_}, {g}")
        for (g, u, cg_, cu_, z_) in GR_: k(f"v_exp_f32 {z_[0]}, {z_[0]}"); k(f"v_exp_f32 {z_[1]}, {z_[1]}")
        for (g, u, cg_, cu_, z_) in GR_: k(f"v_pk_fma_f32 {u}, {cu_}, {rcv[0:2]}, {u} op_sel_hi:[1,0,1]")
        for (g, u, cg_, cu_, z_) in GR_: k(f"v_pk_fma_f32 {z_}, {z_}, {rcv[2:4]}, {rcv[2:4]} op_sel:[0,1,1] op_sel_hi:[1,1,1]")
        for (g, u, cg_, cu_, z_) in GR_: k(f"v_rcp_f32 {z_[0]}, {z_[0]}"); k(f"v_rcp_f32 {z_[1]}, {z_[1]}")
        for (g, u, cg_, cu_, z_) in GR_: k(f"v_pk_mul_f32 {u}, {u}, {g}")
        for (g, u, cg_, cu_, z_) in GR_: k(f"v_pk_mul_f32 {u}, {u}, {z_}")
        for lp in range(2):
            U = acc[i][2*lp+1]
            for hlf in range(2): k(f"v_cvt_pk_bf16_f32 {o[2*lp+hlf]}, {U[2*hlf]}, {U[2*hlf+1]}")
        k.nop(2)
        k(f"v_permlane32_swap_b32 {o[0]}, {o[2]}")
        k(f"v_permlane32_swap_b32 {o[1]}, {o[3]}")
        k(f"buffer_store_dwordx4 {o}, {vst}, {wsrd}, {so} offen offset:{(i & 1) * 256} sc1")
        if i == 1: k(f"s_add_u32 {so}, {so}, {112*1024}")
    k(f"s_lshl_b32 {sflag}, {srb}, 1"); k(f"s_add_u32 {sflag}, {sflag}, {sa}"); k(f"s_lshl_b32 {sflag}, {sflag}, 4")
    k(f"s_add_u32 {sflag}, {sflag}, {sj}"); k(f"s_lshl_b32 {sflag}, {sflag}, 2"); k(f"s_add_u32 {sflag}, {sflag}, {sb}")
    k(f"s_lshl_b32 {sflag}, {sflag}, 3"); k(f"s_add_u32 {sflag}, {sflag}, {L.FL_H}")
    k(f"s_branch {lep}")
    k.label(llight)
    mkL = k.mark(); k.release(mkA); k.snext = mkL[2]
    va = k.v(); vb = k.v(); ax = k.v(); awk = k.v()
    ones = k.v(4); fw = [k.v(4) for _ in range(4)]; fx = [k.v(4) for _ in range(4)]
    kv = k.v(4); ckv = k.v(4); ssum = k.v(4); ssq = k.v(4); gr = k.v(4); R2 = k.v(12)
    srdK = srdG; stile = sWo
    k(f"s_cmp_eq_u32 {sa}, 1")
    k(f"s_cselect_b64 {srdK[0:2]}, {pv}, {pk_}")
    k(f"s_and_b32 {srdK[1]}, {srdK[1]}, 0xffff"); k(f"s_mov_b32 {srdK[2]}, 16384"); k(f"s_mov_b32 {srdK[3]}, 0x20000")
    k(f"s_and_b32 {stile}, {sj}, 1"); k(f"s_lshl_b32 {stile}, {stile}, 2"); k(f"s_add_u32 {stile}, {stile}, {sb}")
    k(f"s_lshl_b32 {so}, {srb}, 3"); k(f"s_add_u32 {so}, {so}, {stile}"); k(f"s_lshl_b32 {so}, {so}, 1"); k(f"s_add_u32 {so}, {so}, {sa}")
    k(f"s_lshl_b32 {so}, {so}, 13")
    k(f"s_lshl_b32 {st2}, {sb}, 1"); k(f"s_add_u32 {st2}, {st2}, {sa}"); k(f"s_lshl_b32 {st2}, {st2}, 13"); k(f"s_add_u32 {st2}, {st2}, {WR}")
    k(f"s_lshl_b32 {st}, {sa}, 7"); k(f"v_xor_b32 {va}, {st}, {l16}")
    for n in range(8):
        k(f"s_add_u32 m0, {st2}, {n*1024}")
        k(f"v_xor_b32 {vb}, {n*16}, {va}")
        k(f"buffer_load_dwordx4 {vb}, {xsrd}, {so} offen lds")
        k(f"s_add_u32 {so}, {so}, 1024")
    k(f"v_lshrrev_b32 {t1}, 1, {lane}")
    k(f"v_and_b32 {t2}, 0x13, {t1}"); k(f"v_and_b32 {t3}, 4, {t1}"); k(f"v_lshl_or_b32 {t2}, {t3}, 1, {t2}")
    k(f"v_and_b32 {t3}, 8, {t1}"); k(f"v_lshrrev_b32 {t3}, 1, {t3}"); k(f"v_or_b32 {t2}, {t3}, {t2}")
    k(f"v_lshlrev_b32 {vb}, 5, {t2}"); k(f"v_and_b32 {t0}, 1, {lane}"); k(f"v_lshl_add_u32 {vb}, {t0}, 4, {vb}")
    k(f"s_lshl_b32 {st}, {sb}, 12"); k(f"s_lshl_b32 m0, {sw}, 12"); k.nop(1)
    for n in range(4): k(f"buffer_load_dwordx4 {vb}, {srdK}, {st} offen offset:{n*1024} lds")
    dma_x(0); dma_x(1); dma_q(0)
    dma_q(1); dma_x(0)
    dma_q(2); dma_x(1)
    dma_q(3); dma_x(0)
    k(f"v_xor_b32 {t0}, {r16}, {kg}")
    k(f"v_lshlrev_b32 {ax}, 10, {r16}"); k(f"v_lshl_add_u32 {ax}, {t0}, 4, {ax}")
    k(f"s_lshl_b32 {st}, {sb}, 14"); k(f"s_add_u32 {st}, {st}, {WR}"); k(f"v_add_u32 {ax}, {st}, {ax}")
    k(f"v_lshrrev_b32 {t0}, 1, {kg}"); k(f"v_lshlrev_b32 {t1}, 4, {t0}")
    k(f"v_and_b32 {t0}, 1, {kg}"); k(f"v_lshl_add_u32 {t1}, {t0}, 2, {t1}")
    k(f"v_lshrrev_b32 {t2}, 2, {r16}"); k(f"v_add_u32 {t1}, {t1}, {t2}")
    k(f"v_and_b32 {t3}, 3, {lane}"); k(f"v_lshlrev_b32 {t3}, 3, {t3}")
    k(f"v_lshl_add_u32 {awk}, {t1}, 5, {t3}"); k(f"s_lshl_b32 {st}, {sa}, 14"); k(f"v_add_u32 {awk}, {st}, {awk}")
    for r in range(4):
        k(f"v_mov_b32 {ones[r]}, 0x3f803f80")
        for z in (kv, ckv, ssum, ssq): k(f"v_mov_b32 {z[r]}, 0")
    mktag()
    k(f"v_mov_b32 {gr[2]}, {tag[0]}"); k(f"v_mov_b32 {gr[3]}, {tag[1]}")
    k("s_waitcnt vmcnt(6)")
    k("s_barrier")
    k(f"s_mov_b32 {sit}, 0")
    lkv = k.newlabel("kvloop"); lv = k.newlabel("tv"); lj_ = k.newlabel("tj")
    k.label(lkv)
    for s_ in range(4):
        if s_: k(f"v_xor_b32 {t0}, {s_*64}, {ax}")
        k(f"ds_read_b128 {fx[s_]}, {t0 if s_ else ax}")
        k(f"ds_read_b64_tr_b16 {fw[s_][0:2]}, {awk} offset:{s_*1024}")
        k(f"ds_read_b64_tr_b16 {fw[s_][2:4]}, {awk} offset:{s_*1024 + 256}")
    k(f"v_add_u32 {ax}, 256, {ax}"); k(f"v_add_u32 {awk}, 4096, {awk}")
    k("s_waitcnt lgkmcnt(0)")
    k(f"s_cmp_eq_u32 {sa}, 1"); k(f"s_cbranch_scc1 {lv}")
    for s_ in range(4):
        k(f"{MF16} {kv}, {fw[s_]}, {fx[s_]}, {kv}")
        k(f"{MF16} {ckv}, {fw[s_]}, {ones}, {ckv}")
    k(f"s_branch {lj_}")
    k.label(lv)
    for s_ in range(4):
        k(f"{MF16} {kv}, {fx[s_]}, {fw[s_]}, {kv}")
        k(f"{MF16} {ckv}, {ones}, {fw[s_]}, {ckv}")
    k.label(lj_)
    for s_ in range(4):
        k(f"{MF16} {ssum}, {ones}, {fx[s_]}, {ssum}")
        k(f"{MF16} {ssq}, {fx[s_]}, {fx[s_]}, {ssq}")
    k(f"s_add_u32 {sit}, {sit}, 1"); k(f"s_cmp_lt_u32 {sit}, 4"); k(f"s_cbranch_scc1 {lkv}")
    k.nop(8)
    k(f"v_and_b32 {t1}, 3, {r16}")
    k(f"v_cmp_eq_u32 vcc, 1, {t1}"); k.nop(2)
    k(f"v_cndmask_b32 {t0}, {ssq[0]}, {ssq[1]}, vcc")
    k(f"v_cmp_eq_u32 vcc, 2, {t1}"); k.nop(2)
    k(f"v_cndmask_b32 {t0}, {t0}, {ssq[2]}, vcc")
    k(f"v_cmp_eq_u32 vcc, 3, {t1}"); k.nop(2)
    k(f"v_cndmask_b32 {t0}, {t0}, {ssq[3]}, vcc")
    k(f"v_mul_f32 {gr[0]}, {fbits(-1.0/512)}, {ssum[0]}")
    k(f"v_mul_f32 {t0}, {fbits(1.0/512)}, {t0}")
    k(f"v_fma_f32 {t0}, -{gr[0]}, {gr[0]}, {t0}")
    k(f"v_max_f32 {t0}, 0, {t0}")
    k(f"v_add_f32 {gr[1]}, {fbits(1e-5)}, {t0}")
    k(f"v_lshrrev_b32 {t3}, 2, {r16}")
    k(f"v_lshlrev_b32 {t2}, 4, {r16}")
    k(f"v_cmp_eq_u32 vcc, {t3}, {kg}")
    k(f"s_lshl_b32 {st}, {stile}, 8"); k(f"s_lshl_b32 {so}, {srb}, 11"); k(f"s_add_u32 {so}, {so}, {st}")
    k(f"s_add_u32 {so}, {so}, {L.ROWG}")
    sv = srdU[0:2]
    k(f"s_and_saveexec_b64 {sv}, vcc")
    k(f"buffer_store_dwordx4 {gr}, {t2}, {wsrd}, {so} offen sc1")
    k(f"s_mov_b64 exec, {sv}")
    k(f"s_lshr_b32 {st}, {stile}, 1"); k(f"s_lshl_b32 {so}, {srb}, 2"); k(f"s_add_u32 {so}, {so}, {st}"); k(f"s_lshl_b32 {so}, {so}, 11")
    k(f"s_add_u32 {so}, {so}, {L.KVF}")
    k(f"s_and_b32 {st}, {stile}, 1")
    k("s_waitcnt lgkmcnt(0)")
    lv = k.newlabel("ev"); lj_ = k.newlabel("ej")
    k(f"s_cmp_eq_u32 {sa}, 1"); k(f"s_cbranch_scc1 {lv}")
    k(f"v_lshl_add_u32 {va}, {t3}, 4, {r16}"); k(f"v_lshlrev_b32 {va}, 2, {va}")
    k(f"ds_bpermute_b32 {R2[1]}, {va}, {gr[1]}")
    k("s_waitcnt lgkmcnt(0)")
    k(f"v_rsq_f32 {t1}, {R2[1]}")
    for r in range(4): k(f"v_fma_f32 {kv[r]}, {ckv[r]}, {gr[0]}, {kv[r]}")
    for r in range(4): k(f"v_mul_f32 {kv[r]}, {kv[r]}, {t1}")
    k(f"s_lshl_b32 {st}, {st}, 8"); k(f"s_add_u32 {so}, {so}, {st}")
    k(f"v_and_b32 {t0}, 1, {kg}"); k(f"v_lshl_add_u32 {t3}, {t0}, 9, {t2}")
    k(f"s_branch {lj_}")
    k.label(lv)
    k(f"v_mul_u32_u24 {va}, 80, {kg}")
    for r in range(4):
        k(f"ds_bpermute_b32 {R2[2*r]}, {va}, {gr[0]} offset:{4*r}")
        k(f"ds_bpermute_b32 {R2[2*r+1]}, {va}, {gr[1]} offset:{4*r}")
    k("s_waitcnt lgkmcnt(0)")
    for r in range(4): k(f"v_rsq_f32 {R2[2*r+1]}, {R2[2*r+1]}")
    for r in range(4): k(f"v_fma_f32 {kv[r]}, {ckv[0]}, {R2[2*r]}, {kv[r]}")
    for r in range(4): k(f"v_mul_f32 {kv[r]}, {kv[r]}, {R2[2*r+1]}")
    k(f"s_lshl_b32 {st}, {st}, 9"); k(f"s_add_u32 {so}, {so}, {st}"); k(f"s_add_u32 {so}, {so}, 1024")
    k(f"v_and_b32 {t0}, 1, {kg}"); k(f"v_lshl_add_u32 {t3}, {t0}, 8, {t2}")
    k.label(lj_)
    k(f"v_cvt_pk_bf16_f32 {R2[8]}, {kv[0]}, {kv[1]}"); k(f"v_cvt_pk_bf16_f32 {R2[9]}, {kv[2]}, {kv[3]}")
    k(f"v_mov_b32 {R2[10]}, {R2[8]}"); k(f"v_mov_b32 {R2[11]}, {R2[9]}")
    k.nop(2)
    k(f"v_permlane32_swap_b32 {R2[8]}, {R2[10]}")
    k(f"v_permlane32_swap_b32 {R2[9]}, {R2[11]}")
    k("s_mov_b64 exec, 0xffffffff")
    k(f"buffer_store_dwordx4 {R2[8:12]}, {t3}, {wsrd}, {so} offen sc1")
    k("s_mov_b64 exec, -1")
    k(f"s_lshl_b32 {so}, {srb}, 1"); k(f"s_and_b32 {st}, {sj}, 1"); k(f"s_add_u32 {so}, {so}, {st}")
    k(f"s_lshl_b32 {so}, {so}, 3"); k(f"s_add_u32 {so}, {so}, {L.FL_KV}")
    k(f"v_mov_b32 {t0}, 0")
    k("s_waitcnt vmcnt(0)")
    k("s_barrier")
    l_ = k.newlabel("nfl")
    k(f"s_cmp_lg_u32 {sw}, 0"); k(f"s_cbranch_scc1 {l_}")
    k("s_mov_b64 exec, 1")
    k(f"buffer_store_dwordx2 {gr[2:4]}, {t0}, {wsrd}, {so} offen sc1")
    k("s_mov_b64 exec, -1")
    k.label(l_)
    stp(3)
    k.release(mkL)
    k(f"s_mov_b32 {sit}, 0")
    ll = k.newlabel("lloop"); ll0 = k.newlabel("lloop0")
    k(f"s_branch {ll0}")
    k.label(ll)
    for u in range(4):
        k("s_waitcnt vmcnt(4)")
        k("s_barrier")
        if u == 0: k.label(ll0)
        dma_q(u)
        if u == 3:
            l_ = k.newlabel("nox")
            k(f"s_cmp_eq_u32 {sit}, 2"); k(f"s_cbranch_scc1 {l_}")
            dma_x(0); k.label(l_)
        else: dma_x((u & 1) ^ 1)
    k(f"s_add_u32 {sit}, {sit}, 1"); k(f"s_cmp_lt_u32 {sit}, 3"); k(f"s_cbranch_scc1 {ll}")
    k("s_waitcnt vmcnt(0)")
    for u in range(4): k("s_barrier")
    k(f"s_lshl_b32 {sflag}, {srb}, 1"); k(f"s_add_u32 {sflag}, {sflag}, {sa}"); k(f"s_lshl_b32 {sflag}, {sflag}, 4")
    k(f"s_add_u32 {sflag}, {sflag}, {sj}"); k(f"s_lshl_b32 {sflag}, {sflag}, 2"); k(f"s_add_u32 {sflag}, {sflag}, {sb}")
    k(f"s_lshl_b32 {sflag}, {sflag}, 3"); k(f"s_add_u32 {sflag}, {sflag}, {L.FL_H}")
    def put_flag(off_s, va, vb):
        tp = Reg('v', va.base, 2)
        k(f"v_mov_b32 {tp[0]}, {tag[0]}"); k(f"v_mov_b32 {tp[1]}, {tag[1]}"); k(f"v_mov_b32 {vb}, 0")
        k("s_waitcnt vmcnt(0)")
        k("s_mov_b64 exec, 1")
        k(f"buffer_store_dwordx2 {tp}, {vb}, {wsrd}, {off_s} offen sc1")
        k("s_mov_b64 exec, -1")
    k.label(lep)
    sn_ = k.snext; k.release(mkA); k.snext = sn_
    skh = sa
    Q = [k.v(4), k.v(4)]; C = [k.v(16), k.v(16)]; O = [k.v(16), k.v(16)]; S = [k.v(16), k.v(16)]; P = [k.v(8), k.v(8)]
    Kf = [k.v(4), k.v(4)]; Vf = [k.v(8), k.v(8)]
    ak = aX[0]; av = aX[1]; gv = vW; fl2 = k.v(2)
    k.nop(2)
    k(f"s_lshl_b32 {so}, {srb}, 1"); k(f"s_add_u32 {so}, {so}, {shf}"); k(f"s_lshl_b32 {so}, {so}, 1"); k(f"s_and_b32 {st}, {sb}, 1"); k(f"s_add_u32 {so}, {so}, {st}")
    k(f"s_lshl_b32 {so}, {so}, 3"); k(f"s_add_u32 {so}, {so}, {sm}"); k(f"s_lshl_b32 {so}, {so}, 1"); k(f"s_lshr_b32 {st}, {sb}, 1"); k(f"s_add_u32 {so}, {so}, {st}")
    k(f"s_lshl_b32 {so}, {so}, 11"); k(f"s_add_u32 {so}, {so}, {L.OF}")
    l_ = k.newlabel("npois")
    for i in range(4): k(f"v_mov_b32 {Kf[0][i]}, -1")
    k(f"s_cmp_lg_u32 {sa}, {shf}"); k(f"s_cbranch_scc1 {l_}")
    k(f"buffer_store_dwordx4 {Kf[0]}, {l16}, {wsrd}, {so} offen sc1")
    k(f"buffer_store_dwordx4 {Kf[0]}, {l16}, {wsrd}, {so} offen offset:1024 sc1")
    k.label(l_)
    k(f"s_lshl_b32 {st}, {skh}, 10"); k(f"s_add_u32 {so}, {so}, {st}")
    k(f"v_mov_b32 {t2}, {XLOC}")
    k(f"ds_read_b32 {t2}, {t2}")
    k(f"s_lshl_b32 {st}, {skh}, 13")
    k(f"v_add_u32 {ak}, {st}, {l16}")
    k(f"v_lshrrev_b32 {t1}, 5, {lane}"); k(f"v_lshlrev_b32 {t1}, 8, {t1}")
    k(f"v_lshl_add_u32 {gv}, {r16}, 4, {t1}")
    k(f"v_add_u32 {gv}, 1024, {gv}")
    k(f"v_add_u32 {av}, {st}, {gv}")
    vmask = srdQ[0:2]; sph = sks
    k(f"s_mov_b32 {vmask[0]}, 0x0000ffff"); k(f"s_mov_b32 {vmask[1]}, 0x0000ffff")
    k(f"v_mov_b32 {t1}, 0x3f803f80")
    k(f"v_and_b32 {t0}, 27, {lane}")
    k(f"v_cmp_eq_u32 vcc, 16, {t0}")
    k.nop(2)
    k(f"v_cndmask_b32 {t1}, 0, {t1}, vcc")
    for b in range(2):
        for i in range(8): k(f"v_mov_b32 {Vf[b][i]}, {t1}")
    for i in range(8): k(f"v_mov_b32 {P[1][i]}, 0")
    k.nop(2)
    k(f"{MF} {O[0]}, {P[1][0:4]}, {P[1][4:8]}, 0")
    k(f"{MF} {O[1]}, {P[1][0:4]}, {P[1][4:8]}, 0")
    k(f"s_lshl_b32 {st}, {sb}, 11"); k(f"s_add_u32 {st}, {st}, {QLDS}")
    k(f"v_add_u32 {t0}, {st}, {l16}")
    sloc = sxu
    k("s_waitcnt lgkmcnt(0)")
    k(f"v_readfirstlane_b32 {sloc}, {t2}")
    k("s_barrier")
    stp(5)
    if stop == 1:
        put_flag(sflag, fl2, t0)
        stp(1); stp.flush(wsrd, sw, 0, 0, st, t0, t1)
        k("s_endpgm")
    k(f"ds_read_b128 {Q[0]}, {t0}")
    k(f"ds_read_b128 {Q[1]}, {t0} offset:1024")
    k(f"ds_read_b128 {Kf[1]}, {l16}")
    k(f"ds_read_b128 {Kf[0]}, {ak}")
    k("s_waitcnt lgkmcnt(0)")
    k(f"{MF} {S[0]}, {Kf[1]}, {Q[0]}, 0")
    k(f"{MF} {S[1]}, {Kf[1]}, {Q[1]}, 0")
    k.nop(12)
    for h in range(2):
        k(f"v_max3_f32 {t0}, {S[h][0]}, {S[h][1]}, {S[h][2]}")
        for i in range(3, 15, 2):
            k(f"v_max3_f32 {t0}, {S[h][i]}, {S[h][i+1]}, {t0}")
        k(f"v_max_f32 {t0}, {S[h][15]}, {t0}")
        k(f"v_mov_b32 {t1}, {t0}")
        k.nop(2)
        k(f"v_permlane32_swap_b32 {t0}, {t1}")
        k.nop(2)
        k(f"v_max_f32 {t0}, {t0}, {t1}")
        for i in range(16): k(f"v_sub_f32 {C[h][i]}, 0, {t0}")
    k.nop(2)
    k(f"{MF} {S[0]}, {Kf[0]}, {Q[0]}, {C[0]}")
    k.nop(10)
    stp(6)
    hooks = []
    shook = sQo
    k(f"s_mov_b32 {shook}, 0x22")
    def hook(back):
        l1 = k.newlabel("hk")
        k(f"s_bitcmp1_b32 {shook}, {sph}"); k(f"s_cbranch_scc1 {l1}")
        hooks.append((l1, back))
    attn_loop(k, dict(Q=Q, C=C, O=O, S=S, P=P, Kf=Kf, Vf=Vf, ak=ak, av=av, vmask=vmask, sph=sph), 2, hook)
    xa = t3
    sc1 = srdU[0:2]; sct = sWo
    aw0 = ak; aw1 = av
    k(f"v_bfe_u32 {t0}, {lane}, 2, 2"); k(f"v_lshlrev_b32 {aw0}, 7, {t0}")
    k(f"v_lshrrev_b32 {t1}, 5, {lane}"); k(f"v_lshl_add_u32 {aw0}, {t1}, 9, {aw0}")
    k(f"v_bfe_u32 {t0}, {lane}, 3, 1"); k(f"v_lshl_add_u32 {aw0}, {t0}, 6, {aw0}")
    k(f"v_bfe_u32 {t0}, {lane}, 4, 1"); k(f"v_lshl_add_u32 {aw0}, {t0}, 5, {aw0}")
    k(f"v_and_b32 {t0}, 3, {lane}"); k(f"v_lshl_add_u32 {aw0}, {t0}, 3, {aw0}")
    k(f"s_lshr_b32 {st2}, {sw}, 1")
    k(f"s_lshl_b32 {st}, {st2}, 14"); k(f"s_add_u32 {st}, {st}, {WOL}")
    k(f"v_add_u32 {aw0}, {st}, {aw0}"); k(f"v_xor_b32 {aw1}, 64, {aw0}")
    k(f"s_lshl_b32 {sXo}, {srb}, 1"); k(f"s_add_u32 {sXo}, {sXo}, {shf}"); k(f"s_lshl_b32 {sXo}, {sXo}, 1")
    k(f"s_and_b32 {st}, {sw}, 1"); k(f"s_add_u32 {sXo}, {sXo}, {st}"); k(f"s_lshl_b32 {sXo}, {sXo}, 2"); k(f"s_add_u32 {sXo}, {sXo}, {st2}")
    k(f"s_lshl_b32 {sXo}, {sXo}, 13"); k(f"s_add_u32 {sXo}, {sXo}, {L.OF}"); k(f"s_add_u32 {sXb}, {sXo}, 4096")
    k(f"s_lshl_b32 {st2}, {st2}, 12"); k(f"s_lshl_b32 {sct}, {st}, 14"); k(f"s_add_u32 {sct}, {sct}, {st2}"); k(f"s_add_u32 {sct}, {sct}, {XCH}")
    k(f"v_add_u32 {fl2[0]}, {sct}, {l16}")
    k(f"s_add_u32 {sct}, {st2}, {XCH + 32768}"); k(f"s_cmp_eq_u32 {st}, 1"); k(f"s_cselect_b32 {sct}, {st2}, {sct}")
    k(f"v_add_u32 {fl2[1]}, {sct}, {l16}")
    k(f"s_mul_i32 {st}, {sb}, 6144"); k(f"s_add_u32 {st}, {st}, {OXC}")
    k(f"v_add_u32 {xa}, {st}, {l16}")
    k("s_waitcnt lgkmcnt(0)")
    k("s_setprio 3")
    k("s_barrier")
    stp(7)
    lk1 = k.newlabel("kh1"); lj = k.newlabel("khj")
    k(f"s_cmp_eq_u32 {skh}, 1")
    k(f"s_cbranch_scc1 {lk1}")
    for j in range(3): k(f"ds_write_b128 {xa}, {O[1][4*j:4*j+4]} offset:{3072 + 1024*j}")
    k(f"s_branch {lj}")
    k.label(lk1)
    for j in range(3): k(f"ds_write_b128 {xa}, {O[0][4*j:4*j+4]} offset:{1024*j}")
    for i in range(9): k(f"v_mov_b32 {O[0][i]}, {O[1][i]}")
    for i in range(4): k(f"v_mov_b32 {Q[0][i]}, {Q[1][i]}")
    k(f"v_add_u32 {xa}, 3072, {xa}")
    k.label(lj)
    k("s_waitcnt lgkmcnt(0)")
    k("s_barrier")
    if var & 16: stp(2)
    Om = O[0]
    for j in range(3): k(f"ds_read_b128 {O[1][4*j:4*j+4]}, {xa} offset:{1024*j}")
    k("s_waitcnt lgkmcnt(0)")
    for i in range(9): k(f"v_add_f32 {Om[i]}, {Om[i]}, {O[1][i]}")
    k(f"v_max3_f32 {t0}, |{Om[0]}|, |{Om[1]}|, |{Om[2]}|")
    k(f"v_max3_f32 {t0}, |{Om[3]}|, |{Om[4]}|, {t0}")
    k(f"v_max3_f32 {t0}, |{Om[5]}|, |{Om[6]}|, {t0}")
    k(f"v_max_f32 {t0}, |{Om[7]}|, {t0}")
    k(f"v_mov_b32 {t1}, 0x7f800000")
    k(f"v_cmp_nlt_f32 vcc, {t0}, {t1}")
    k(f"v_mov_b32 {t1}, 0x5f800000")
    k(f"v_cmp_nle_f32 {sc1}, {Om[8]}, {t1}")
    k.nop(4)
    k(f"s_or_b64 vcc, vcc, {sc1}")
    fb = k.newlabel("fb"); fin = k.newlabel("fin")
    k(f"s_cbranch_scc1 {fb}")
    k.label(fin)
    k(f"v_rcp_f32 {t0}, {Om[8]}")
    k.nop(1)
    for i in range(8): k(f"v_mul_f32 {Om[i]}, {Om[i]}, {t0}")
    for i in range(4): k(f"v_cvt_pk_bf16_f32 {P[0][i]}, {Om[2*i]}, {Om[2*i+1]}")
    for i in range(4): k(f"v_min_u32 {P[0][i]}, -2, {P[0][i]}")
    lx = k.newlabel("xloc"); ly = k.newlabel("xdone")
    k(f"s_cmp_eq_u32 {sloc}, 1"); k(f"s_cbranch_scc1 {lx}")
    k(f"buffer_store_dwordx4 {P[0][0:4]}, {l16}, {wsrd}, {so} offen sc1")
    k(f"s_branch {ly}")
    k.label(lx)
    k(f"buffer_store_dwordx4 {P[0][0:4]}, {l16}, {wsrd}, {so} offen")
    k.label(ly)
    WF = Reg('v', C[0].base, 64); OFR = Reg('v', S[0].base, 32); SA = [Reg('v', P[1].base, 16), Reg('v', P[1].base + 16, 16)]
    assert O[0].base == C[0].base + 32 and Vf[1].base + 8 == P[1].base + 32, (P[1].base, Vf[1].base)
    def oloads():
        for s_ in range(8): k(f"buffer_load_dwordx4 {OFR[4*s_:4*s_+4]}, {l16}, {wsrd}, {sXb if s_ >= 4 else sXo} offen offset:{(s_&3)*1024} sc1")
    if var & 16: stp(3)
    k("s_barrier")
    k(f"v_and_b32 {t2}, 7, {lane}"); k(f"v_lshlrev_b32 {t2}, 10, {t2}")
    k(f"buffer_load_dword {t1}, {t2}, {wsrd}, {sXo} offen offset:1020 sc1")
    for s_ in range(8):
        for ct in range(2):
            a_ = aw1 if ct else aw0; d_ = WF[8*s_+4*ct:8*s_+4*ct+4]
            k(f"ds_read_b64_tr_b16 {d_[0:2]}, {a_} offset:{s_*2048}")
            k(f"ds_read_b64_tr_b16 {d_[2:4]}, {a_} offset:{s_*2048+1024}")
        if s_ >= 2: k("s_waitcnt lgkmcnt(8)")
    k(f"s_mov_b32 {sit}, 0")
    lc = k.newlabel("csp"); lco = k.newlabel("cspo")
    k.label(lc)
    k("s_waitcnt vmcnt(0)")
    k(f"v_cmp_eq_u32 vcc, -1, {t1}")
    k.nop(4)
    k("s_cmp_eq_u64 vcc, 0")
    k(f"s_cbranch_scc1 {lco}")
    k(f"s_add_u32 {sit}, {sit}, 1"); k(f"s_cmp_ge_u32 {sit}, {SPIN_MAX}")
    k(f"s_cbranch_scc1 {lco}")
    k(f"buffer_load_dword {t1}, {t2}, {wsrd}, {sXo} offen offset:1020 sc1")
    k(f"s_branch {lc}")
    k.label(lco)
    if var & 16: stp(5)
    oloads()
    k(f"s_mov_b32 {sit}, 0")
    lp = k.newlabel("osp"); lo = k.newlabel("ospo")
    k("s_waitcnt lgkmcnt(0)")
    k.label(lp)
    for s_ in range(8):
        k(f"s_waitcnt vmcnt({7 - s_})")
        for ct in range(2):
            k(f"{MF} {SA[ct]}, {WF[8*s_+4*ct:8*s_+4*ct+4]}, {OFR[4*s_:4*s_+4]}, {SA[ct] if s_ else 0}")
            if s_ == 0 and ct == 0: k(f"v_max_u32 {t0}, {OFR[0]}, {OFR[1]}")
            else: k(f"v_max3_u32 {t0}, {OFR[4*s_+2*ct]}, {OFR[4*s_+2*ct+1]}, {t0}")
    k(f"v_cmp_eq_u32 vcc, -1, {t0}")
    k.nop(4)
    k("s_cmp_eq_u64 vcc, 0")
    k(f"s_cbranch_scc1 {lo}")
    k(f"s_add_u32 {sit}, {sit}, 1"); k(f"s_cmp_ge_u32 {sit}, {SPIN_MAX}")
    k(f"s_cbranch_scc1 {lo}")
    oloads()
    k(f"s_branch {lp}")
    k.label(lo)
    stp(4)
    k.nop(4)
    for ct in range(2):
        for j in range(4): k(f"ds_write_b128 {fl2[ct]}, {SA[ct][4*j:4*j+4]} offset:{j*1024}")
    k("s_waitcnt lgkmcnt(0)")
    if var & 16: stp(6)
    k("s_barrier")
    stp(1); stp.flush(wsrd, sw, 0, 0, st, t0, t1)
    k.label(lend)
    k("s_endpgm")
    for (l1, back) in hooks:
        k.label(l1)
        l2 = k.newlabel("hk2")
        l3 = k.newlabel("hk3")
        k(f"s_cmp_eq_u32 {sph}, 2"); k(f"s_cbranch_scc1 {l2}")
        k(f"s_cmp_eq_u32 {sph}, 5"); k(f"s_cbranch_scc1 {l3}")
        put_flag(sflag, fl2, t2)
        k("s_barrier")
        k(f"s_branch {back}")
        k.label(l3)
        k(f"s_lshl_b32 {st}, s2, 3"); k(f"s_add_u32 {st}, {st}, {sw}"); k(f"s_lshl_b32 {st}, {st}, 3"); k(f"s_add_u32 {st}, {st}, {L.FL_P}")
        k("s_mov_b64 exec, 1")
        k(f"buffer_store_dwordx2 {fl2}, {t2}, {wsrd}, {st} offen sc1")
        k("s_mov_b64 exec, -1")
        k(f"s_branch {back}")
        k.label(l2)
        put_flag(sflag, fl2, t2)
        k(f"s_branch {back}")
    k.label(fb)
    kvsrd = k.srd(ws, 0x20000, L.KVF, r=srdG)
    R = dict(Q=Q[0], C=C[0], O=Om, S=S, P=P, Kf=Kf, Vf=Vf, gk=l16, gv=gv, tmp=t0, tmp2=t1, sct=sct, vmask=vmask)
    emit_attn_fallback(k, R, kvsrd, lane, fin, sc=" sc1")
    k.release(mk0)
    k.label(lsvc)
    from mega_svc import emit_service
    emit_service(k, locals())
    return k

def build(path, stamps=0, stop=0, var=0):
    HDR = open("recurrent_scan__grouped_kv_mqa__geglu_ffn__prompt.s.ref").read().split("; Override launch")[0]
    k = mega_kernel("mega_kernel", stamps=stamps, stop=stop, var=var)
    errs = check_hazards(k.lines, k.name)
    open(path, "w").write(module_text(HDR, [k], [(k.name, 256, 768, LDS_ALL)]))
    print(path, "vgprs", k.vhigh, "sgprs", k.shigh, "hazards", len(errs))

if __name__ == "__main__":
    import sys
    if sys.argv[1] == "dbg":
        DBGWG = int(sys.argv[2])
        build(f"t_dbg{DBGWG}.s", stamps=8)
    elif sys.argv[1] == "ship":
        build("recurrent_scan__grouped_kv_mqa__geglu_ffn__prompt.s")
    else:
        for a in sys.argv[1:]:
            stop, var = (a.split(":") + ["0"])[:2]
            build(f"t_mega{stop}_{var}.s", stamps=8, stop=int(stop), var=int(var))
```

```python
from asm import *
import layout as L
from p1 import fbits, C0, C1
from attn import emit_attn_fallback
from p2b import attn_loop
MF = "v_mfma_f32_32x32x16_bf16"
MF16 = "v_mfma_f32_16x16x32_bf16"
LDS_ALL = 163840
WR = 49152
XR = 114688
ROWC = 147456
CSO = ROWC + 2048
QLDS = ROWC + 4096
TASKX = 0
TASKW = 16384
WQR = 32768
XLOC = ROWC + 3584
QCS = ROWC + 3072
DRING = 131072
SPIN_MAX = 1 << 15
WOL = 16384
OXC = 81920
XCH = 114688
PROG = 0
TQ3 = 1024

DBGWG = None
class St:
    def __init__(self, k, n): self.k = k; self.regs = [k.s(2) for _ in range(n)]
    def __call__(self, i, cyc=False):
        if i < len(self.regs): self.k(f"{'s_memtime' if cyc else 's_memrealtime'} {self.regs[i]}")
    def flush(self, wsrd_big, sw, wave, base, st, t0, t1):
        if not self.regs: return
        k = self.k
        if DBGWG is not None:
            l = k.newlabel("nost")
            pdg = k.s(2)
            k(f"s_load_dwordx2 {pdg}, s[0:1], 80")
            k("s_waitcnt lgkmcnt(0)")
            k(f"s_cmp_lg_u32 {sw}, {wave}"); k(f"s_cbranch_scc1 {l}")
            k(f"s_cmp_lg_u32 s2, {DBGWG}"); k(f"s_cbranch_scc1 {l}")
            k(f"v_mov_b32 {t1}, 0")
            for i, r in enumerate(self.regs):
                k(f"s_sub_u32 {st}, {r[0]}, {self.regs[0][0]}")
                k(f"v_mov_b32 {t0}, {st}")
                k(f"global_store_dword {t1}, {t0}, {pdg} offset:{4*(base+i)}")
                k.nop(1)
            k.label(l)
            return
        l = k.newlabel("nost")
        k("s_waitcnt lgkmcnt(0)")
        k(f"s_cmp_lg_u32 {sw}, {wave}"); k(f"s_cbranch_scc1 {l}")
        k(f"s_lshl_b32 {st}, s2, 8"); k(f"s_add_u32 {st}, {st}, {L.STAMP}")
        k(f"v_mov_b32 {t1}, 0")
        for i, r in enumerate(self.regs):
            k(f"v_mov_b32 {t0}, {r[0]}")
            k(f"buffer_store_dword {t0}, {t1}, {wsrd_big}, {st} offen offset:{4*(base+i)}")
            k.nop(1)
        k.label(l)

def mega_kernel(name, stamps=0, stop=0, var=0):
    k = Kernel(name, 256, 768, LDS_ALL, nvgpr=168)
    lend = k.newlabel("end")
    k("s_cmp_ge_u32 s2, 256")
    k(f"s_cbranch_scc1 {lend}")
    pa = k.s(8); pb = k.s(8); pwo = k.s(2); ws = k.s(2)
    px, pq, pk_, pv = pa[0:2], pa[2:4], pa[4:6], pa[6:8]
    pg, pu, pd, pout = pb[0:2], pb[2:4], pb[4:6], pb[6:8]
    k(f"s_load_dwordx8 {pa}, s[0:1], 0")
    k(f"s_load_dwordx8 {pb}, s[0:1], 48")
    k(f"s_load_dwordx2 {ws}, s[0:1], 88")
    k(f"s_load_dwordx2 {pwo}, s[0:1], 32")
    stp = St(k, stamps)
    stp(0)
    lane = k.v(); l16 = k.v(); t0 = k.v(); t1 = k.v(); t2 = k.v(); t3 = k.v(); r16 = k.v(); kg = k.v()
    sw = k.s(); srb = k.s(); sj = k.s(); st = k.s(); st2 = k.s(); tag = k.s(2)
    k(f"v_lshrrev_b32 {t0}, 6, v0")
    k(f"v_and_b32 {lane}, 63, v0")
    k(f"v_readfirstlane_b32 {sw}, {t0}")
    k(f"v_lshlrev_b32 {l16}, 4, {lane}")
    k(f"v_and_b32 {r16}, 15, {lane}")
    k(f"v_lshrrev_b32 {kg}, 4, {lane}")
    k(f"s_and_b32 {srb}, s2, 3"); k(f"s_lshl_b32 {srb}, {srb}, 2")
    k(f"s_bfe_u32 {st}, s2, 0x20003"); k(f"s_add_u32 {srb}, {srb}, {st}")
    shf = k.s(); sm = k.s()
    k(f"s_bfe_u32 {shf}, s2, 0x10002"); k(f"s_mul_i32 {sj}, {shf}, 7")
    k(f"s_lshr_b32 {sm}, s2, 5"); k(f"s_add_u32 {sj}, {sj}, {sm}"); k(f"s_add_u32 {st2}, {shf}, 14")
    k(f"s_cmp_eq_u32 {sm}, 7"); k(f"s_cselect_b32 {sj}, {st2}, {sj}")
    sb = k.s()
    k(f"s_and_b32 {sb}, {sw}, 3")
    aW = [k.v(), k.v()]
    k(f"v_lshrrev_b32 {t0}, 2, {r16}")
    k(f"v_lshl_add_u32 {t1}, {kg}, 3, {t0}")
    k(f"v_and_b32 {t2}, 1, {kg}"); k(f"v_lshl_add_u32 {t2}, {t2}, 2, {t0}")
    k(f"s_lshl_b32 {st}, {sb}, 1")
    k(f"v_xor_b32 {t2}, {st}, {t2}")
    k(f"v_lshlrev_b32 {aW[0]}, 8, {t1}")
    k(f"v_lshl_add_u32 {aW[0]}, {t2}, 5, {aW[0]}")
    k(f"v_and_b32 {t2}, 3, {lane}"); k(f"v_lshl_add_u32 {aW[0]}, {t2}, 3, {aW[0]}")
    k(f"v_add_u32 {aW[0]}, {WR}, {aW[0]}")
    k(f"v_xor_b32 {aW[1]}, 32, {aW[0]}")
    k("s_waitcnt lgkmcnt(0)")
    wsrd = k.srd(ws, 0x2000000)
    xsrd = k.srd(px, 2048 * 1024)
    nb = k.s(2)
    k(f"s_add_u32 {nb[0]}, {ws[0]}, {L.NONCE}"); k(f"s_addc_u32 {nb[1]}, {ws[1]}, 0")
    k(f"s_load_dwordx2 {tag}, {nb}, 0")
    lsvc = k.newlabel("svc")
    k(f"s_cmp_ge_u32 {sw}, 8")
    k(f"s_cbranch_scc1 {lsvc}")
    mk0 = k.mark()
    def mktag():
        k("s_waitcnt lgkmcnt(0)")
        k(f"s_mul_i32 {tag[0]}, {tag[0]}, 1664525"); k(f"s_add_u32 {tag[0]}, {tag[0]}, 1013904223")
        k(f"s_mul_i32 {tag[1]}, {tag[1]}, 22695477"); k(f"s_add_u32 {tag[1]}, {tag[1]}, 1")
    sa = k.s(); scol = k.s(); sks = k.s(); sWo = k.s(); sxu = k.s(); sXo = k.s(); sXb = k.s()
    sldW = k.s(); sldX = k.s(); sxs = k.s(); sldQ = k.s(); sqc = k.s(); sQo = k.s()
    srdG = k.srd(pg, 512*3584); srdU = k.srd(pu, 512*3584); srdQ = k.srd(pq, 512*1024)
    k(f"s_lshr_b32 {sa}, {sw}, 2")
    k(f"s_lshl_b32 {scol}, {sj}, 8"); k(f"s_lshl_b32 {sqc}, {sm}, 7")
    k(f"s_and_b32 {sks}, {srb}, 12")
    k(f"s_lshr_b32 {sxu}, {sks}, 1")
    vW = k.v(); vX = [k.v(), k.v()]; vQ = k.v()
    k(f"s_lshl_b32 {st}, {sw}, 2"); k(f"v_add_u32 {t0}, {st}, {kg}")
    k(f"v_mul_u32_u24 {vW}, 3584, {t0}")
    k(f"s_and_b32 {st2}, {sw}, 2"); k(f"s_lshl_b32 {st}, {st2}, 2")
    k(f"v_lshlrev_b32 {t1}, 1, {kg}"); k(f"v_add_u32 {t1}, {st}, {t1}")
    k(f"v_xor_b32 {t1}, {t1}, {r16}")
    k(f"v_lshl_add_u32 {vW}, {t1}, 4, {vW}")
    k(f"v_lshrrev_b32 {t0}, 3, {lane}"); k(f"v_lshlrev_b32 {vX[0]}, 10, {t0}")
    k(f"v_and_b32 {t1}, 7, {lane}"); k(f"v_xor_b32 {t1}, {t1}, {kg}")
    k(f"v_lshl_add_u32 {vX[0]}, {t1}, 4, {vX[0]}")
    k(f"v_xor_b32 {vX[1]}, 64, {vX[0]}"); k(f"v_add_u32 {vX[1]}, 8192, {vX[1]}")
    k(f"s_lshl_b32 {st}, {sw}, 2"); k(f"v_lshrrev_b32 {t0}, 3, {lane}"); k(f"v_add_u32 {t0}, {st}, {t0}")
    k(f"v_and_b32 {t2}, 1, {kg}"); k(f"v_or_b32 {t2}, {st2}, {t2}"); k(f"v_lshlrev_b32 {t2}, 1, {t2}")
    k(f"v_and_b32 {t1}, 7, {lane}"); k(f"v_xor_b32 {t1}, {t2}, {t1}")
    k(f"v_lshlrev_b32 {vQ}, 10, {t0}"); k(f"v_lshl_add_u32 {vQ}, {t1}, 4, {vQ}")
    k(f"s_lshl_b32 {sXb}, {srb}, 17"); k(f"s_lshl_b32 {st}, {sw}, 14"); k(f"s_add_u32 {sXb}, {sXb}, {st}")
    k(f"s_lshl_b32 {sldW}, {sw}, 10"); k(f"s_add_u32 {sldW}, {sldW}, {WR}")
    k(f"s_lshl_b32 {sldX}, {sw}, 11"); k(f"s_add_u32 {sldX}, {sldX}, {XR}")
    k(f"s_lshl_b32 {sldQ}, {sw}, 9"); k(f"s_add_u32 {sldQ}, {sldQ}, {WQR}")
    k(f"s_mov_b32 {sxs}, {sldX}")
    def dma_w(slot):
        k(f"s_mul_i32 {sWo}, {sks}, {32*3584}")
        k(f"s_add_u32 m0, {sldW}, {slot*16384}")
        k(f"s_add_u32 {sWo}, {sWo}, {scol}")
        k(f"buffer_load_dwordx4 {vW}, {srdG}, {sWo} offen lds")
        k(f"s_add_u32 m0, {sldW}, {slot*16384 + 8192}")
        k.nop(1)
        k(f"buffer_load_dwordx4 {vW}, {srdU}, {sWo} offen lds")
    def dma_q(slot):
        k(f"s_lshl_b32 {sQo}, {sks}, 15")
        k(f"s_add_u32 m0, {sldQ}, {slot*4096}")
        k(f"s_add_u32 {sQo}, {sQo}, {sqc}")
        k("s_mov_b64 exec, 0xffffffff")
        k(f"buffer_load_dwordx4 {vQ}, {srdQ}, {sQo} offen lds")
        k("s_mov_b64 exec, -1")
        k(f"s_add_u32 {sks}, {sks}, 1"); k(f"s_and_b32 {sks}, {sks}, 15")
    def dma_x(e):
        if e == 0:
            k(f"s_lshl_b32 {sXo}, {sxu}, 7")
            k(f"s_mov_b32 m0, {sxs}")
            k(f"s_add_u32 {sXo}, {sXo}, {sXb}")
            k(f"buffer_load_dwordx4 {vX[0]}, {xsrd}, {sXo} offen lds")
        else:
            k(f"s_add_u32 m0, {sxs}, 1024")
            k(f"s_add_u32 {sxu}, {sxu}, 1")
            k(f"buffer_load_dwordx4 {vX[1]}, {xsrd}, {sXo} offen lds")
            k(f"s_and_b32 {sxu}, {sxu}, 7")
            k(f"s_add_u32 {sxs}, {sxs}, 16384")
            k(f"s_cmp_ge_u32 {sxs}, {XR + 3*16384}")
            k(f"s_cselect_b32 {sxs}, {sldX}, {sxs}")
    sit = k.s(); so = k.s(); sflag = k.s()
    llight = k.newlabel("light"); lep = k.newlabel("epdone")
    k(f"s_cmp_ge_u32 {sj}, 14")
    k(f"s_cbranch_scc1 {llight}")
    dma_w(0); dma_x(0); dma_x(1); dma_q(0)
    aX = [k.v(), k.v()]
    k(f"v_lshrrev_b32 {t0}, 1, {r16}"); k(f"v_xor_b32 {t0}, {t0}, {kg}")
    k(f"v_lshlrev_b32 {aX[0]}, 7, {r16}"); k(f"v_lshl_add_u32 {aX[0]}, {t0}, 4, {aX[0]}")
    k(f"v_xor_b32 {aX[1]}, 64, {aX[0]}")
    k(f"s_lshl_b32 {st}, {sa}, 13"); k(f"s_add_u32 {st}, {st}, {XR}")
    k(f"v_add_u32 {aX[0]}, {st}, {aX[0]}"); k(f"v_add_u32 {aX[1]}, {st}, {aX[1]}")
    mkA = k.mark()
    acc = [[k.v(4) for T in range(4)] for i in range(4)]
    fX = [[k.v(4) for i in range(4)] for _ in range(2)]
    fW = [[k.v(4) for T in range(4)] for _ in range(2)]
    for i in range(4):
        for T in range(4):
            for r in range(4): k(f"v_mov_b32 {acc[i][T][r]}, 0")
    sxr = k.s(); sdl = k.s()
    k(f"s_mov_b32 {sxr}, 0")
    def reads(slot, fb, par):
        R = [f"ds_read_b128 {fX[fb][i]}, {aX[par]} offset:{i*2048}" for i in range(4)]
        W = []
        for T in range(4):
            o = slot * 16384 + (T & 1) * 8192
            W.append(f"ds_read_b64_tr_b16 {fW[fb][T][0:2]}, {aW[T >> 1]} offset:{o}")
            W.append(f"ds_read_b64_tr_b16 {fW[fb][T][2:4]}, {aW[T >> 1]} offset:{o+1024}")
        return [R[0], W[0], W[1], R[1], W[2], W[3], R[2], W[4], W[5], R[3], W[6], W[7]]
    def xadv(par):
        if par == 0:
            k(f"s_add_u32 {sxr}, {sxr}, 1"); k(f"s_cmp_eq_u32 {sxr}, 3")
            k(f"s_cselect_b32 {sxr}, 0, {sxr}"); k(f"s_mov_b32 {sdl}, 16384")
            k(f"s_cselect_b32 {sdl}, {(-32768) & 0xffffffff}, {sdl}")
        k(f"v_add_u32 {aX[par]}, {sdl}, {aX[par]}")
    dma_w(1); dma_q(1); dma_x(0)
    dma_w(2); dma_q(2); dma_x(1)
    dma_w(3); dma_q(3); dma_x(0)
    mktag()
    k("s_waitcnt vmcnt(12)")
    k("s_barrier")
    stp(2)
    for r in reads(0, 0, 0): k(r)
    xadv(0)
    def stage(u, vm, do_dma, do_read, lastx=False):
        fb = u & 1
        k(f"s_waitcnt vmcnt({vm}) lgkmcnt(0)" if vm is not None else "s_waitcnt lgkmcnt(0)")
        k("s_barrier")
        R = reads((u + 1) % 4, fb ^ 1, fb ^ 1) if do_read else []
        j = 0
        for i in range(4):
            for T in range(4):
                k(f"{MF16} {acc[i][T]}, {fW[fb][T]}, {fX[fb][i]}, {acc[i][T]}")
                if j < len(R): k(R[j])
                if j == 12 and do_read: xadv(fb ^ 1)
                if j == 2 and do_dma: dma_w(u)
                if j == 5 and do_dma: dma_q(u)
                if j == 8 and do_dma:
                    if lastx:
                        l_ = k.newlabel("nox")
                        k(f"s_cmp_eq_u32 {sit}, 2"); k(f"s_cbranch_scc1 {l_}")
                        dma_x(0); k.label(l_)
                    else: dma_x((u & 1) ^ 1)
                j += 1
    k(f"s_mov_b32 {sit}, 0")
    loop = k.newlabel("p1loop")
    k(".p2align 6")
    k.label(loop)
    for u in range(4): stage(u, 8, True, True, lastx=(u == 3))
    k(f"s_add_u32 {sit}, {sit}, 1")
    k(f"s_cmp_lt_u32 {sit}, 3")
    k(f"s_cbranch_scc1 {loop}")
    stage(0, 7, False, True); stage(1, 3, False, True); stage(2, 0, False, True); stage(3, None, False, False)
    stp(3)
    RC = fX[0]; CS = fW[0]
    k(f"s_lshl_b32 {st}, {sa}, 10"); k(f"s_add_u32 {st}, {st}, {ROWC}")
    k(f"v_lshl_add_u32 {t0}, {r16}, 4, {st}")
    for i in range(4): k(f"ds_read_b128 {RC[i]}, {t0} offset:{i*256}")
    k(f"s_lshl_b32 {st}, {sb}, 7"); k(f"s_add_u32 {st}, {st}, {CSO}")
    k(f"v_lshl_add_u32 {t1}, {kg}, 4, {st}")
    for T in range(4): k(f"ds_read_b128 {CS[T]}, {t1} offset:{(T & 1) * 512 + (T >> 1) * 64}")
    vst = k.v()
    k(f"v_lshlrev_b32 {vst}, 4, {r16}"); k(f"v_lshl_add_u32 {vst}, {kg}, 9, {vst}")
    tm = [fX[1][j // 2][2*(j&1):2*(j&1)+2] for j in range(8)]
    outp = [fW[1][0], fW[1][1]]
    k(f"s_lshl_b32 {so}, {srb}, 1"); k(f"s_add_u32 {so}, {so}, {sa}"); k(f"s_mul_i32 {so}, {so}, 224")
    k(f"s_lshl_b32 {st}, {sj}, 3"); k(f"s_add_u32 {so}, {so}, {st}"); k(f"s_lshl_b32 {st}, {sb}, 1"); k(f"s_add_u32 {so}, {so}, {st}")
    k(f"s_lshl_b32 {so}, {so}, 10"); k(f"s_add_u32 {so}, {so}, {L.HF}")
    k("s_waitcnt lgkmcnt(0)")
    for i in range(4):
        rcv = RC[i]; o = outp[i & 1]
        GR_ = [(acc[i][2*lp][2*h:2*h+2], acc[i][2*lp+1][2*h:2*h+2], CS[2*lp][2*h:2*h+2], CS[2*lp+1][2*h:2*h+2], tm[2*lp+h]) for lp in range(2) for h in range(2)]
        for (g, u, cg_, cu_, z_) in GR_: k(f"v_pk_fma_f32 {g}, {cg_}, {rcv[0:2]}, {g} op_sel_hi:[1,0,1]")
        for (g, u, cg_, cu_, z_) in GR_: k(f"v_pk_mul_f32 {z_}, {g}, {g}")
        for (g, u, cg_, cu_, z_) in GR_: k(f"v_pk_fma_f32 {z_}, {z_}, {rcv[2:4]}, {rcv[0:2]} op_sel:[0,0,1] op_sel_hi:[1,0,1]")
        for (g, u, cg_, cu_, z_) in GR_: k(f"v_pk_mul_f32 {z_}, {z_}, {g}")
        for (g, u, cg_, cu_, z_) in GR_: k(f"v_exp_f32 {z_[0]}, {z_[0]}"); k(f"v_exp_f32 {z_[1]}, {z_[1]}")
        for (g, u, cg_, cu_, z_) in GR_: k(f"v_pk_fma_f32 {u}, {cu_}, {rcv[0:2]}, {u} op_sel_hi:[1,0,1]")
        for (g, u, cg_, cu_, z_) in GR_: k(f"v_pk_fma_f32 {z_}, {z_}, {rcv[2:4]}, {rcv[2:4]} op_sel:[0,1,1] op_sel_hi:[1,1,1]")
        for (g, u, cg_, cu_, z_) in GR_: k(f"v_rcp_f32 {z_[0]}, {z_[0]}"); k(f"v_rcp_f32 {z_[1]}, {z_[1]}")
        for (g, u, cg_, cu_, z_) in GR_: k(f"v_pk_mul_f32 {u}, {u}, {g}")
        for (g, u, cg_, cu_, z_) in GR_: k(f"v_pk_mul_f32 {u}, {u}, {z_}")
        for lp in range(2):
            U = acc[i][2*lp+1]
            for hlf in range(2): k(f"v_cvt_pk_bf16_f32 {o[2*lp+hlf]}, {U[2*hlf]}, {U[2*hlf+1]}")
        k.nop(2)
        k(f"v_permlane32_swap_b32 {o[0]}, {o[2]}")
        k(f"v_permlane32_swap_b32 {o[1]}, {o[3]}")
        k(f"buffer_store_dwordx4 {o}, {vst}, {wsrd}, {so} offen offset:{(i & 1) * 256} sc1")
        if i == 1: k(f"s_add_u32 {so}, {so}, {112*1024}")
    k(f"s_lshl_b32 {sflag}, {srb}, 1"); k(f"s_add_u32 {sflag}, {sflag}, {sa}"); k(f"s_lshl_b32 {sflag}, {sflag}, 4")
    k(f"s_add_u32 {sflag}, {sflag}, {sj}"); k(f"s_lshl_b32 {sflag}, {sflag}, 2"); k(f"s_add_u32 {sflag}, {sflag}, {sb}")
    k(f"s_lshl_b32 {sflag}, {sflag}, 3"); k(f"s_add_u32 {sflag}, {sflag}, {L.FL_H}")
    k(f"s_branch {lep}")
    k.label(llight)
    mkL = k.mark(); k.release(mkA); k.snext = mkL[2]
    va = k.v(); vb = k.v(); ax = k.v(); awk = k.v()
    ones = k.v(4); fw = [k.v(4) for _ in range(4)]; fx = [k.v(4) for _ in range(4)]
    kv = k.v(4); ckv = k.v(4); ssum = k.v(4); ssq = k.v(4); gr = k.v(4); R2 = k.v(12)
    srdK = srdG; stile = sWo
    k(f"s_cmp_eq_u32 {sa}, 1")
    k(f"s_cselect_b64 {srdK[0:2]}, {pv}, {pk_}")
    k(f"s_and_b32 {srdK[1]}, {srdK[1]}, 0xffff"); k(f"s_mov_b32 {srdK[2]}, 16384"); k(f"s_mov_b32 {srdK[3]}, 0x20000")
    k(f"s_and_b32 {stile}, {sj}, 1"); k(f"s_lshl_b32 {stile}, {stile}, 2"); k(f"s_add_u32 {stile}, {stile}, {sb}")
    k(f"s_lshl_b32 {so}, {srb}, 3"); k(f"s_add_u32 {so}, {so}, {stile}"); k(f"s_lshl_b32 {so}, {so}, 1"); k(f"s_add_u32 {so}, {so}, {sa}")
    k(f"s_lshl_b32 {so}, {so}, 13")
    k(f"s_lshl_b32 {st2}, {sb}, 1"); k(f"s_add_u32 {st2}, {st2}, {sa}"); k(f"s_lshl_b32 {st2}, {st2}, 13"); k(f"s_add_u32 {st2}, {st2}, {WR}")
    k(f"s_lshl_b32 {st}, {sa}, 7"); k(f"v_xor_b32 {va}, {st}, {l16}")
    for n in range(8):
        k(f"s_add_u32 m0, {st2}, {n*1024}")
        k(f"v_xor_b32 {vb}, {n*16}, {va}")
        k(f"buffer_load_dwordx4 {vb}, {xsrd}, {so} offen lds")
        k(f"s_add_u32 {so}, {so}, 1024")
    k(f"v_lshrrev_b32 {t1}, 1, {lane}")
    k(f"v_and_b32 {t2}, 0x13, {t1}"); k(f"v_and_b32 {t3}, 4, {t1}"); k(f"v_lshl_or_b32 {t2}, {t3}, 1, {t2}")
    k(f"v_and_b32 {t3}, 8, {t1}"); k(f"v_lshrrev_b32 {t3}, 1, {t3}"); k(f"v_or_b32 {t2}, {t3}, {t2}")
    k(f"v_lshlrev_b32 {vb}, 5, {t2}"); k(f"v_and_b32 {t0}, 1, {lane}"); k(f"v_lshl_add_u32 {vb}, {t0}, 4, {vb}")
    k(f"s_lshl_b32 {st}, {sb}, 12"); k(f"s_lshl_b32 m0, {sw}, 12"); k.nop(1)
    for n in range(4): k(f"buffer_load_dwordx4 {vb}, {srdK}, {st} offen offset:{n*1024} lds")
    dma_x(0); dma_x(1); dma_q(0)
    dma_q(1); dma_x(0)
    dma_q(2); dma_x(1)
    dma_q(3); dma_x(0)
    k(f"v_xor_b32 {t0}, {r16}, {kg}")
    k(f"v_lshlrev_b32 {ax}, 10, {r16}"); k(f"v_lshl_add_u32 {ax}, {t0}, 4, {ax}")
    k(f"s_lshl_b32 {st}, {sb}, 14"); k(f"s_add_u32 {st}, {st}, {WR}"); k(f"v_add_u32 {ax}, {st}, {ax}")
    k(f"v_lshrrev_b32 {t0}, 1, {kg}"); k(f"v_lshlrev_b32 {t1}, 4, {t0}")
    k(f"v_and_b32 {t0}, 1, {kg}"); k(f"v_lshl_add_u32 {t1}, {t0}, 2, {t1}")
    k(f"v_lshrrev_b32 {t2}, 2, {r16}"); k(f"v_add_u32 {t1}, {t1}, {t2}")
    k(f"v_and_b32 {t3}, 3, {lane}"); k(f"v_lshlrev_b32 {t3}, 3, {t3}")
    k(f"v_lshl_add_u32 {awk}, {t1}, 5, {t3}"); k(f"s_lshl_b32 {st}, {sa}, 14"); k(f"v_add_u32 {awk}, {st}, {awk}")
    for r in range(4):
        k(f"v_mov_b32 {ones[r]}, 0x3f803f80")
        for z in (kv, ckv, ssum, ssq): k(f"v_mov_b32 {z[r]}, 0")
    mktag()
    k(f"v_mov_b32 {gr[2]}, {tag[0]}"); k(f"v_mov_b32 {gr[3]}, {tag[1]}")
    k("s_waitcnt vmcnt(6)")
    k("s_barrier")
    k(f"s_mov_b32 {sit}, 0")
    lkv = k.newlabel("kvloop"); lv = k.newlabel("tv"); lj_ = k.newlabel("tj")
    k.label(lkv)
    for s_ in range(4):
        if s_: k(f"v_xor_b32 {t0}, {s_*64}, {ax}")
        k(f"ds_read_b128 {fx[s_]}, {t0 if s_ else ax}")
        k(f"ds_read_b64_tr_b16 {fw[s_][0:2]}, {awk} offset:{s_*1024}")
        k(f"ds_read_b64_tr_b16 {fw[s_][2:4]}, {awk} offset:{s_*1024 + 256}")
    k(f"v_add_u32 {ax}, 256, {ax}"); k(f"v_add_u32 {awk}, 4096, {awk}")
    k("s_waitcnt lgkmcnt(0)")
    k(f"s_cmp_eq_u32 {sa}, 1"); k(f"s_cbranch_scc1 {lv}")
    for s_ in range(4):
        k(f"{MF16} {kv}, {fw[s_]}, {fx[s_]}, {kv}")
        k(f"{MF16} {ckv}, {fw[s_]}, {ones}, {ckv}")
    k(f"s_branch {lj_}")
    k.label(lv)
    for s_ in range(4):
        k(f"{MF16} {kv}, {fx[s_]}, {fw[s_]}, {kv}")
        k(f"{MF16} {ckv}, {ones}, {fw[s_]}, {ckv}")
    k.label(lj_)
    for s_ in range(4):
        k(f"{MF16} {ssum}, {ones}, {fx[s_]}, {ssum}")
        k(f"{MF16} {ssq}, {fx[s_]}, {fx[s_]}, {ssq}")
    k(f"s_add_u32 {sit}, {sit}, 1"); k(f"s_cmp_lt_u32 {sit}, 4"); k(f"s_cbranch_scc1 {lkv}")
    k.nop(8)
    k(f"v_and_b32 {t1}, 3, {r16}")
    k(f"v_cmp_eq_u32 vcc, 1, {t1}"); k.nop(2)
    k(f"v_cndmask_b32 {t0}, {ssq[0]}, {ssq[1]}, vcc")
    k(f"v_cmp_eq_u32 vcc, 2, {t1}"); k.nop(2)
    k(f"v_cndmask_b32 {t0}, {t0}, {ssq[2]}, vcc")
    k(f"v_cmp_eq_u32 vcc, 3, {t1}"); k.nop(2)
    k(f"v_cndmask_b32 {t0}, {t0}, {ssq[3]}, vcc")
    k(f"v_mul_f32 {gr[0]}, {fbits(-1.0/512)}, {ssum[0]}")
    k(f"v_mul_f32 {t0}, {fbits(1.0/512)}, {t0}")
    k(f"v_fma_f32 {t0}, -{gr[0]}, {gr[0]}, {t0}")
    k(f"v_max_f32 {t0}, 0, {t0}")
    k(f"v_add_f32 {gr[1]}, {fbits(1e-5)}, {t0}")
    k(f"v_lshrrev_b32 {t3}, 2, {r16}")
    k(f"v_lshlrev_b32 {t2}, 4, {r16}")
    k(f"v_cmp_eq_u32 vcc, {t3}, {kg}")
    k(f"s_lshl_b32 {st}, {stile}, 8"); k(f"s_lshl_b32 {so}, {srb}, 11"); k(f"s_add_u32 {so}, {so}, {st}")
    k(f"s_add_u32 {so}, {so}, {L.ROWG}")
    sv = srdU[0:2]
    k(f"s_and_saveexec_b64 {sv}, vcc")
    k(f"buffer_store_dwordx4 {gr}, {t2}, {wsrd}, {so} offen sc1")
    k(f"s_mov_b64 exec, {sv}")
    k(f"s_lshr_b32 {st}, {stile}, 1"); k(f"s_lshl_b32 {so}, {srb}, 2"); k(f"s_add_u32 {so}, {so}, {st}"); k(f"s_lshl_b32 {so}, {so}, 11")
    k(f"s_add_u32 {so}, {so}, {L.KVF}")
    k(f"s_and_b32 {st}, {stile}, 1")
    k("s_waitcnt lgkmcnt(0)")
    lv = k.newlabel("ev"); lj_ = k.newlabel("ej")
    k(f"s_cmp_eq_u32 {sa}, 1"); k(f"s_cbranch_scc1 {lv}")
    k(f"v_lshl_add_u32 {va}, {t3}, 4, {r16}"); k(f"v_lshlrev_b32 {va}, 2, {va}")
    k(f"ds_bpermute_b32 {R2[1]}, {va}, {gr[1]}")
    k("s_waitcnt lgkmcnt(0)")
    k(f"v_rsq_f32 {t1}, {R2[1]}")
    for r in range(4): k(f"v_fma_f32 {kv[r]}, {ckv[r]}, {gr[0]}, {kv[r]}")
    for r in range(4): k(f"v_mul_f32 {kv[r]}, {kv[r]}, {t1}")
    k(f"s_lshl_b32 {st}, {st}, 8"); k(f"s_add_u32 {so}, {so}, {st}")
    k(f"v_and_b32 {t0}, 1, {kg}"); k(f"v_lshl_add_u32 {t3}, {t0}, 9, {t2}")
    k(f"s_branch {lj_}")
    k.label(lv)
    k(f"v_mul_u32_u24 {va}, 80, {kg}")
    for r in range(4):
        k(f"ds_bpermute_b32 {R2[2*r]}, {va}, {gr[0]} offset:{4*r}")
        k(f"ds_bpermute_b32 {R2[2*r+1]}, {va}, {gr[1]} offset:{4*r}")
    k("s_waitcnt lgkmcnt(0)")
    for r in range(4): k(f"v_rsq_f32 {R2[2*r+1]}, {R2[2*r+1]}")
    for r in range(4): k(f"v_fma_f32 {kv[r]}, {ckv[0]}, {R2[2*r]}, {kv[r]}")
    for r in range(4): k(f"v_mul_f32 {kv[r]}, {kv[r]}, {R2[2*r+1]}")
    k(f"s_lshl_b32 {st}, {st}, 9"); k(f"s_add_u32 {so}, {so}, {st}"); k(f"s_add_u32 {so}, {so}, 1024")
    k(f"v_and_b32 {t0}, 1, {kg}"); k(f"v_lshl_add_u32 {t3}, {t0}, 8, {t2}")
    k.label(lj_)
    k(f"v_cvt_pk_bf16_f32 {R2[8]}, {kv[0]}, {kv[1]}"); k(f"v_cvt_pk_bf16_f32 {R2[9]}, {kv[2]}, {kv[3]}")
    k(f"v_mov_b32 {R2[10]}, {R2[8]}"); k(f"v_mov_b32 {R2[11]}, {R2[9]}")
    k.nop(2)
    k(f"v_permlane32_swap_b32 {R2[8]}, {R2[10]}")
    k(f"v_permlane32_swap_b32 {R2[9]}, {R2[11]}")
    k("s_mov_b64 exec, 0xffffffff")
    k(f"buffer_store_dwordx4 {R2[8:12]}, {t3}, {wsrd}, {so} offen sc1")
    k("s_mov_b64 exec, -1")
    k(f"s_lshl_b32 {so}, {srb}, 1"); k(f"s_and_b32 {st}, {sj}, 1"); k(f"s_add_u32 {so}, {so}, {st}")
    k(f"s_lshl_b32 {so}, {so}, 3"); k(f"s_add_u32 {so}, {so}, {L.FL_KV}")
    k(f"v_mov_b32 {t0}, 0")
    k("s_waitcnt vmcnt(0)")
    k("s_barrier")
    l_ = k.newlabel("nfl")
    k(f"s_cmp_lg_u32 {sw}, 0"); k(f"s_cbranch_scc1 {l_}")
    k("s_mov_b64 exec, 1")
    k(f"buffer_store_dwordx2 {gr[2:4]}, {t0}, {wsrd}, {so} offen sc1")
    k("s_mov_b64 exec, -1")
    k.label(l_)
    stp(3)
    k.release(mkL)
    k(f"s_mov_b32 {sit}, 0")
    ll = k.newlabel("lloop"); ll0 = k.newlabel("lloop0")
    k(f"s_branch {ll0}")
    k.label(ll)
    for u in range(4):
        k("s_waitcnt vmcnt(4)")
        k("s_barrier")
        if u == 0: k.label(ll0)
        dma_q(u)
        if u == 3:
            l_ = k.newlabel("nox")
            k(f"s_cmp_eq_u32 {sit}, 2"); k(f"s_cbranch_scc1 {l_}")
            dma_x(0); k.label(l_)
        else: dma_x((u & 1) ^ 1)
    k(f"s_add_u32 {sit}, {sit}, 1"); k(f"s_cmp_lt_u32 {sit}, 3"); k(f"s_cbranch_scc1 {ll}")
    k("s_waitcnt vmcnt(0)")
    for u in range(4): k("s_barrier")
    k(f"s_lshl_b32 {sflag}, {srb}, 1"); k(f"s_add_u32 {sflag}, {sflag}, {sa}"); k(f"s_lshl_b32 {sflag}, {sflag}, 4")
    k(f"s_add_u32 {sflag}, {sflag}, {sj}"); k(f"s_lshl_b32 {sflag}, {sflag}, 2"); k(f"s_add_u32 {sflag}, {sflag}, {sb}")
    k(f"s_lshl_b32 {sflag}, {sflag}, 3"); k(f"s_add_u32 {sflag}, {sflag}, {L.FL_H}")
    def put_flag(off_s, va, vb):
        tp = Reg('v', va.base, 2)
        k(f"v_mov_b32 {tp[0]}, {tag[0]}"); k(f"v_mov_b32 {tp[1]}, {tag[1]}"); k(f"v_mov_b32 {vb}, 0")
        k("s_waitcnt vmcnt(0)")
        k("s_mov_b64 exec, 1")
        k(f"buffer_store_dwordx2 {tp}, {vb}, {wsrd}, {off_s} offen sc1")
        k("s_mov_b64 exec, -1")
    k.label(lep)
    sn_ = k.snext; k.release(mkA); k.snext = sn_
    skh = sa
    Q = [k.v(4), k.v(4)]; C = [k.v(16), k.v(16)]; O = [k.v(16), k.v(16)]; S = [k.v(16), k.v(16)]; P = [k.v(8), k.v(8)]
    Kf = [k.v(4), k.v(4)]; Vf = [k.v(8), k.v(8)]
    ak = aX[0]; av = aX[1]; gv = vW; fl2 = k.v(2)
    k.nop(2)
    k(f"s_lshl_b32 {so}, {srb}, 1"); k(f"s_add_u32 {so}, {so}, {shf}"); k(f"s_lshl_b32 {so}, {so}, 1"); k(f"s_and_b32 {st}, {sb}, 1"); k(f"s_add_u32 {so}, {so}, {st}")
    k(f"s_lshl_b32 {so}, {so}, 3"); k(f"s_add_u32 {so}, {so}, {sm}"); k(f"s_lshl_b32 {so}, {so}, 1"); k(f"s_lshr_b32 {st}, {sb}, 1"); k(f"s_add_u32 {so}, {so}, {st}")
    k(f"s_lshl_b32 {so}, {so}, 11"); k(f"s_add_u32 {so}, {so}, {L.OF}")
    l_ = k.newlabel("npois")
    for i in range(4): k(f"v_mov_b32 {Kf[0][i]}, -1")
    k(f"s_cmp_lg_u32 {sa}, {shf}"); k(f"s_cbranch_scc1 {l_}")
    k(f"buffer_store_dwordx4 {Kf[0]}, {l16}, {wsrd}, {so} offen sc1")
    k(f"buffer_store_dwordx4 {Kf[0]}, {l16}, {wsrd}, {so} offen offset:1024 sc1")
    k.label(l_)
    k(f"s_lshl_b32 {st}, {skh}, 10"); k(f"s_add_u32 {so}, {so}, {st}")
    k(f"v_mov_b32 {t2}, {XLOC}")
    k(f"ds_read_b32 {t2}, {t2}")
    k(f"s_lshl_b32 {st}, {skh}, 13")
    k(f"v_add_u32 {ak}, {st}, {l16}")
    k(f"v_lshrrev_b32 {t1}, 5, {lane}"); k(f"v_lshlrev_b32 {t1}, 8, {t1}")
    k(f"v_lshl_add_u32 {gv}, {r16}, 4, {t1}")
    k(f"v_add_u32 {gv}, 1024, {gv}")
    k(f"v_add_u32 {av}, {st}, {gv}")
    vmask = srdQ[0:2]; sph = sks
    k(f"s_mov_b32 {vmask[0]}, 0x0000ffff"); k(f"s_mov_b32 {vmask[1]}, 0x0000ffff")
    k(f"v_mov_b32 {t1}, 0x3f803f80")
    k(f"v_and_b32 {t0}, 27, {lane}")
    k(f"v_cmp_eq_u32 vcc, 16, {t0}")
    k.nop(2)
    k(f"v_cndmask_b32 {t1}, 0, {t1}, vcc")
    for b in range(2):
        for i in range(8): k(f"v_mov_b32 {Vf[b][i]}, {t1}")
    for i in range(8): k(f"v_mov_b32 {P[1][i]}, 0")
    k.nop(2)
    k(f"{MF} {O[0]}, {P[1][0:4]}, {P[1][4:8]}, 0")
    k(f"{MF} {O[1]}, {P[1][0:4]}, {P[1][4:8]}, 0")
    k(f"s_lshl_b32 {st}, {sb}, 11"); k(f"s_add_u32 {st}, {st}, {QLDS}")
    k(f"v_add_u32 {t0}, {st}, {l16}")
    sloc = sxu
    k("s_waitcnt lgkmcnt(0)")
    k(f"v_readfirstlane_b32 {sloc}, {t2}")
    k("s_barrier")
    stp(5)
    if stop == 1:
        put_flag(sflag, fl2, t0)
        stp(1); stp.flush(wsrd, sw, 0, 0, st, t0, t1)
        k("s_endpgm")
    k(f"ds_read_b128 {Q[0]}, {t0}")
    k(f"ds_read_b128 {Q[1]}, {t0} offset:1024")
    k(f"ds_read_b128 {Kf[1]}, {l16}")
    k(f"ds_read_b128 {Kf[0]}, {ak}")
    k("s_waitcnt lgkmcnt(0)")
    k(f"{MF} {S[0]}, {Kf[1]}, {Q[0]}, 0")
    k(f"{MF} {S[1]}, {Kf[1]}, {Q[1]}, 0")
    k.nop(12)
    for h in range(2):
        k(f"v_max3_f32 {t0}, {S[h][0]}, {S[h][1]}, {S[h][2]}")
        for i in range(3, 15, 2):
            k(f"v_max3_f32 {t0}, {S[h][i]}, {S[h][i+1]}, {t0}")
        k(f"v_max_f32 {t0}, {S[h][15]}, {t0}")
        k(f"v_mov_b32 {t1}, {t0}")
        k.nop(2)
        k(f"v_permlane32_swap_b32 {t0}, {t1}")
        k.nop(2)
        k(f"v_max_f32 {t0}, {t0}, {t1}")
        for i in range(16): k(f"v_sub_f32 {C[h][i]}, 0, {t0}")
    k.nop(2)
    k(f"{MF} {S[0]}, {Kf[0]}, {Q[0]}, {C[0]}")
    k.nop(10)
    stp(6)
    hooks = []
    shook = sQo
    k(f"s_mov_b32 {shook}, 0x22")
    def hook(back):
        l1 = k.newlabel("hk")
        k(f"s_bitcmp1_b32 {shook}, {sph}"); k(f"s_cbranch_scc1 {l1}")
        hooks.append((l1, back))
    attn_loop(k, dict(Q=Q, C=C, O=O, S=S, P=P, Kf=Kf, Vf=Vf, ak=ak, av=av, vmask=vmask, sph=sph), 2, hook)
    xa = t3
    sc1 = srdU[0:2]; sct = sWo
    aw0 = ak; aw1 = av
    k(f"v_bfe_u32 {t0}, {lane}, 2, 2"); k(f"v_lshlrev_b32 {aw0}, 7, {t0}")
    k(f"v_lshrrev_b32 {t1}, 5, {lane}"); k(f"v_lshl_add_u32 {aw0}, {t1}, 9, {aw0}")
    k(f"v_bfe_u32 {t0}, {lane}, 3, 1"); k(f"v_lshl_add_u32 {aw0}, {t0}, 6, {aw0}")
    k(f"v_bfe_u32 {t0}, {lane}, 4, 1"); k(f"v_lshl_add_u32 {aw0}, {t0}, 5, {aw0}")
    k(f"v_and_b32 {t0}, 3, {lane}"); k(f"v_lshl_add_u32 {aw0}, {t0}, 3, {aw0}")
    k(f"s_lshr_b32 {st2}, {sw}, 1")
    k(f"s_lshl_b32 {st}, {st2}, 14"); k(f"s_add_u32 {st}, {st}, {WOL}")
    k(f"v_add_u32 {aw0}, {st}, {aw0}"); k(f"v_xor_b32 {aw1}, 64, {aw0}")
    k(f"s_lshl_b32 {sXo}, {srb}, 1"); k(f"s_add_u32 {sXo}, {sXo}, {shf}"); k(f"s_lshl_b32 {sXo}, {sXo}, 1")
    k(f"s_and_b32 {st}, {sw}, 1"); k(f"s_add_u32 {sXo}, {sXo}, {st}"); k(f"s_lshl_b32 {sXo}, {sXo}, 2"); k(f"s_add_u32 {sXo}, {sXo}, {st2}")
    k(f"s_lshl_b32 {sXo}, {sXo}, 13"); k(f"s_add_u32 {sXo}, {sXo}, {L.OF}"); k(f"s_add_u32 {sXb}, {sXo}, 4096")
    k(f"s_lshl_b32 {st2}, {st2}, 12"); k(f"s_lshl_b32 {sct}, {st}, 14"); k(f"s_add_u32 {sct}, {sct}, {st2}"); k(f"s_add_u32 {sct}, {sct}, {XCH}")
    k(f"v_add_u32 {fl2[0]}, {sct}, {l16}")
    k(f"s_add_u32 {sct}, {st2}, {XCH + 32768}"); k(f"s_cmp_eq_u32 {st}, 1"); k(f"s_cselect_b32 {sct}, {st2}, {sct}")
    k(f"v_add_u32 {fl2[1]}, {sct}, {l16}")
    k(f"s_mul_i32 {st}, {sb}, 6144"); k(f"s_add_u32 {st}, {st}, {OXC}")
    k(f"v_add_u32 {xa}, {st}, {l16}")
    k("s_waitcnt lgkmcnt(0)")
    k("s_setprio 3")
    k("s_barrier")
    stp(7)
    lk1 = k.newlabel("kh1"); lj = k.newlabel("khj")
    k(f"s_cmp_eq_u32 {skh}, 1")
    k(f"s_cbranch_scc1 {lk1}")
    for j in range(3): k(f"ds_write_b128 {xa}, {O[1][4*j:4*j+4]} offset:{3072 + 1024*j}")
    k(f"s_branch {lj}")
    k.label(lk1)
    for j in range(3): k(f"ds_write_b128 {xa}, {O[0][4*j:4*j+4]} offset:{1024*j}")
    for i in range(9): k(f"v_mov_b32 {O[0][i]}, {O[1][i]}")
    for i in range(4): k(f"v_mov_b32 {Q[0][i]}, {Q[1][i]}")
    k(f"v_add_u32 {xa}, 3072, {xa}")
    k.label(lj)
    k("s_waitcnt lgkmcnt(0)")
    k("s_barrier")
    if var & 16: stp(2)
    Om = O[0]
    for j in range(3): k(f"ds_read_b128 {O[1][4*j:4*j+4]}, {xa} offset:{1024*j}")
    k("s_waitcnt lgkmcnt(0)")
    for i in range(9): k(f"v_add_f32 {Om[i]}, {Om[i]}, {O[1][i]}")
    k(f"v_max3_f32 {t0}, |{Om[0]}|, |{Om[1]}|, |{Om[2]}|")
    k(f"v_max3_f32 {t0}, |{Om[3]}|, |{Om[4]}|, {t0}")
    k(f"v_max3_f32 {t0}, |{Om[5]}|, |{Om[6]}|, {t0}")
    k(f"v_max_f32 {t0}, |{Om[7]}|, {t0}")
    k(f"v_mov_b32 {t1}, 0x7f800000")
    k(f"v_cmp_nlt_f32 vcc, {t0}, {t1}")
    k(f"v_mov_b32 {t1}, 0x5f800000")
    k(f"v_cmp_nle_f32 {sc1}, {Om[8]}, {t1}")
    k.nop(4)
    k(f"s_or_b64 vcc, vcc, {sc1}")
    fb = k.newlabel("fb"); fin = k.newlabel("fin")
    k(f"s_cbranch_scc1 {fb}")
    k.label(fin)
    k(f"v_rcp_f32 {t0}, {Om[8]}")
    k.nop(1)
    for i in range(8): k(f"v_mul_f32 {Om[i]}, {Om[i]}, {t0}")
    for i in range(4): k(f"v_cvt_pk_bf16_f32 {P[0][i]}, {Om[2*i]}, {Om[2*i+1]}")
    for i in range(4): k(f"v_min_u32 {P[0][i]}, -2, {P[0][i]}")
    lx = k.newlabel("xloc"); ly = k.newlabel("xdone")
    k(f"s_cmp_eq_u32 {sloc}, 1"); k(f"s_cbranch_scc1 {lx}")
    k(f"buffer_store_dwordx4 {P[0][0:4]}, {l16}, {wsrd}, {so} offen sc1")
    k(f"s_branch {ly}")
    k.label(lx)
    k(f"buffer_store_dwordx4 {P[0][0:4]}, {l16}, {wsrd}, {so} offen")
    k.label(ly)
    WF = Reg('v', C[0].base, 64); OFR = Reg('v', S[0].base, 32); SA = [Reg('v', P[1].base, 16), Reg('v', P[1].base + 16, 16)]
    assert O[0].base == C[0].base + 32 and Vf[1].base + 8 == P[1].base + 32, (P[1].base, Vf[1].base)
    def oloads():
        for s_ in range(8): k(f"buffer_load_dwordx4 {OFR[4*s_:4*s_+4]}, {l16}, {wsrd}, {sXb if s_ >= 4 else sXo} offen offset:{(s_&3)*1024} sc1")
    if var & 16: stp(3)
    k("s_barrier")
    k(f"v_and_b32 {t2}, 7, {lane}"); k(f"v_lshlrev_b32 {t2}, 10, {t2}")
    k(f"buffer_load_dword {t1}, {t2}, {wsrd}, {sXo} offen offset:1020 sc1")
    for s_ in range(8):
        for ct in range(2):
            a_ = aw1 if ct else aw0; d_ = WF[8*s_+4*ct:8*s_+4*ct+4]
            k(f"ds_read_b64_tr_b16 {d_[0:2]}, {a_} offset:{s_*2048}")
            k(f"ds_read_b64_tr_b16 {d_[2:4]}, {a_} offset:{s_*2048+1024}")
        if s_ >= 2: k("s_waitcnt lgkmcnt(8)")
    k(f"s_mov_b32 {sit}, 0")
    lc = k.newlabel("csp"); lco = k.newlabel("cspo")
    k.label(lc)
    k("s_waitcnt vmcnt(0)")
    k(f"v_cmp_eq_u32 vcc, -1, {t1}")
    k.nop(4)
    k("s_cmp_eq_u64 vcc, 0")
    k(f"s_cbranch_scc1 {lco}")
    k(f"s_add_u32 {sit}, {sit}, 1"); k(f"s_cmp_ge_u32 {sit}, {SPIN_MAX}")
    k(f"s_cbranch_scc1 {lco}")
    k(f"buffer_load_dword {t1}, {t2}, {wsrd}, {sXo} offen offset:1020 sc1")
    k(f"s_branch {lc}")
    k.label(lco)
    if var & 16: stp(5)
    oloads()
    k(f"s_mov_b32 {sit}, 0")
    lp = k.newlabel("osp"); lo = k.newlabel("ospo")
    k("s_waitcnt lgkmcnt(0)")
    k.label(lp)
    for s_ in range(8):
        k(f"s_waitcnt vmcnt({7 - s_})")
        for ct in range(2):
            k(f"{MF} {SA[ct]}, {WF[8*s_+4*ct:8*s_+4*ct+4]}, {OFR[4*s_:4*s_+4]}, {SA[ct] if s_ else 0}")
            if s_ == 0 and ct == 0: k(f"v_max_u32 {t0}, {OFR[0]}, {OFR[1]}")
            else: k(f"v_max3_u32 {t0}, {OFR[4*s_+2*ct]}, {OFR[4*s_+2*ct+1]}, {t0}")
    k(f"v_cmp_eq_u32 vcc, -1, {t0}")
    k.nop(4)
    k("s_cmp_eq_u64 vcc, 0")
    k(f"s_cbranch_scc1 {lo}")
    k(f"s_add_u32 {sit}, {sit}, 1"); k(f"s_cmp_ge_u32 {sit}, {SPIN_MAX}")
    k(f"s_cbranch_scc1 {lo}")
    oloads()
    k(f"s_branch {lp}")
    k.label(lo)
    stp(4)
    k.nop(4)
    for ct in range(2):
        for j in range(4): k(f"ds_write_b128 {fl2[ct]}, {SA[ct][4*j:4*j+4]} offset:{j*1024}")
    k("s_waitcnt lgkmcnt(0)")
    if var & 16: stp(6)
    k("s_barrier")
    stp(1); stp.flush(wsrd, sw, 0, 0, st, t0, t1)
    k.label(lend)
    k("s_endpgm")
    for (l1, back) in hooks:
        k.label(l1)
        l2 = k.newlabel("hk2")
        l3 = k.newlabel("hk3")
        k(f"s_cmp_eq_u32 {sph}, 2"); k(f"s_cbranch_scc1 {l2}")
        k(f"s_cmp_eq_u32 {sph}, 5"); k(f"s_cbranch_scc1 {l3}")
        put_flag(sflag, fl2, t2)
        k("s_barrier")
        k(f"s_branch {back}")
        k.label(l3)
        k(f"s_lshl_b32 {st}, s2, 3"); k(f"s_add_u32 {st}, {st}, {sw}"); k(f"s_lshl_b32 {st}, {st}, 3"); k(f"s_add_u32 {st}, {st}, {L.FL_P}")
        k("s_mov_b64 exec, 1")
        k(f"buffer_store_dwordx2 {fl2}, {t2}, {wsrd}, {st} offen sc1")
        k("s_mov_b64 exec, -1")
        k(f"s_branch {back}")
        k.label(l2)
        put_flag(sflag, fl2, t2)
        k(f"s_branch {back}")
    k.label(fb)
    kvsrd = k.srd(ws, 0x20000, L.KVF, r=srdG)
    R = dict(Q=Q[0], C=C[0], O=Om, S=S, P=P, Kf=Kf, Vf=Vf, gk=l16, gv=gv, tmp=t0, tmp2=t1, sct=sct, vmask=vmask)
    emit_attn_fallback(k, R, kvsrd, lane, fin, sc=" sc1")
    k.release(mk0)
    k.label(lsvc)
    from mega_svc import emit_service
    emit_service(k, locals())
    return k

KN = 'recurrent_scan__grouped_kv_mqa__geglu_ffn__prompt_kernel'
def build(path, stamps=0, stop=0, var=0, single=False):
    HDR = open("recurrent_scan__grouped_kv_mqa__geglu_ffn__prompt.s.ref").read().split("; Override launch")[0]
    k = mega_kernel(KN if single else "mega_kernel", stamps=stamps, stop=stop, var=var)
    errs = check_hazards(k.lines, k.name)
    t = module_text(HDR, [k], [(k.name, 256, 768, LDS_ALL)])
    if single: t = t.replace(f"@launch kernel={KN} ", "@launch ").replace(f"L_{KN}_", "L_")
    open(path, "w").write(t)
    print(path, "vgprs", k.vhigh, "sgprs", k.shigh, "hazards", len(errs))

if __name__ == "__main__":
    import sys
    if sys.argv[1] == "dbg":
        DBGWG = int(sys.argv[2])
        build(f"t_dbg{DBGWG}.s", stamps=8)
    elif sys.argv[1] == "ship":
        build("recurrent_scan__grouped_kv_mqa__geglu_ffn__prompt.s", single=True)
    else:
        for a in sys.argv[1:]:
            stop, var = (a.split(":") + ["0"])[:2]
            build(f"t_mega{stop}_{var}.s", stamps=8, stop=int(stop), var=int(var))
```
